```python
import torch

def _softmax(x, axis=-1):
    return torch.softmax(x, dim=axis)
def _gelu(x):
    return torch.nn.functional.gelu(x, approximate="tanh")
def _silu(x):
    return torch.nn.functional.silu(x)
def _sigmoid(x):
    return torch.sigmoid(x)
def _layernorm(x, axis=-1, eps=1e-5):
    m = x.mean(dim=axis, keepdim=True)
    v = x.var(dim=axis, keepdim=True, unbiased=False)
    return (x - m) / torch.sqrt(v + eps)
def _scatter_add(tgt, idx, src, axis=0):
    return tgt.clone().index_add_(axis, idx, src)
def _segment_sum(src, seg, n):
    out = torch.zeros((n,) + src.shape[1:], dtype=src.dtype)
    return out.index_add_(0, seg, src)
def _pad(x, pw):
    flat = tuple(v for pair in reversed(pw) for v in pair)
    return torch.nn.functional.pad(x, flat)

kernel_name = 'standalone__mha_block_cached__sampling'

def setup_inputs():

    _w = (lambda a: (lambda t: t.to(torch.bfloat16) if t.is_floating_point() else t)(torch.as_tensor(a)))
    B, Sq, D = 16, 8, 1024
    H, Sk, Dh = 32, 2048, 128
    return {
        "x": _w((lambda *s: torch.randn(*s, dtype=torch.bfloat16) * 0.8)(B, Sq, D)),
        "k_cache": _w((lambda *s: torch.randn(*s, dtype=torch.bfloat16) * 0.8)(B, H, Sk, Dh)),
        "v_cache": _w((lambda *s: torch.randn(*s, dtype=torch.bfloat16) * 0.05)(B, H, Sk, Dh)),
        "wq": _w((lambda *s: torch.randn(*s, dtype=torch.bfloat16) * 0.8)(D, H * Dh) * (D ** -0.5)),
        "wo": _w((lambda *s: torch.randn(*s, dtype=torch.bfloat16) * 0.05)(H * Dh, D) * ((H * Dh) ** -0.5)),
    }

def reference(x, k_cache, v_cache, wq, wo):
    B, Sq, D = x.shape
    H, Dh = 32, 128
    q = (lambda x, *d: x.permute(*d))((x @ wq).reshape(B, Sq, H, Dh), 0, 2, 1, 3)
    scores = torch.einsum("bhqd,bhkd->bhqk", q, k_cache) * (Dh ** -0.5)
    p = _softmax(scores, axis=-1)
    o = torch.einsum("bhqk,bhkd->bhqd", p, v_cache)
    return (lambda x, *d: x.permute(*d))(o, 0, 2, 1, 3).reshape(B, Sq, H * Dh) @ wo
```

```python
import sys, math, struct

def f32bits(x): return struct.unpack("<I", struct.pack("<f", x))[0]

class G:
    def __init__(self): self.L = []
    def __call__(self, s): self.L.append("  " + s)
    def label(self, s): self.L.append(s + ":")
    def raw(self, s): self.L.append(s)
    def text(self): return "\n".join(self.L) + "\n"

def vr(a, n=1): return f"v{a}" if n == 1 else f"v[{a}:{a+n-1}]"
def sr(a, n=1): return f"s{a}" if n == 1 else f"s[{a}:{a+n-1}]"

sK, sV, sWQ, sX, sWO, sO, sOUT, sDBG = 20, 24, 28, 32, 36, 40, 44, 48
sW, sH, sBP, sCS, sPre, sIter, sSelLo, sSelHi, sC = 52, 53, 54, 55, 56, 57, 58, 59, 60
sT = [61, 62, 63, 64, 65, 66, 67, 68, 69]
sMask = 70
sBI = 72
vK, vK2, vV, vV2 = 1, 2, 3, 4
vM_, vL, vAl, vT0, vT1, vMn, vLane = 5, 6, 7, 8, 9, 10, 11
vP = 12; vS0 = 16; vS1 = 20; vVt = 24
vQ = 32; vO = 48
vKB = [80, 144]; vVB = [112, 176]; vSP = 208
QP = 0; QF = 65536; QFS = 272
CB = 0; CBQ = 528; CBW = 8 * CBQ; ML = 40960
LDS_A = 65536 + 16 * QFS + 256

SCALE = (128 ** -0.5) * math.log2(math.e)

def srd(g, d, p, size):
    g(f"s_mov_b32 {sr(d)}, {sr(p)}")
    g(f"s_mov_b32 {sr(d+1)}, {sr(p+1)}")
    g(f"s_mov_b32 {sr(d+2)}, {size:#x}")
    g(f"s_mov_b32 {sr(d+3)}, 0x00020000")

def ids(g):
    g("s_load_dwordx16 s[4:19], s[0:1], 0")
    g(f"v_lshrrev_b32 {vr(vT0)}, 6, v0")
    g(f"v_and_b32 {vr(vLane)}, 63, v0")
    g(f"v_readfirstlane_b32 {sr(sW)}, {vr(vT0)}")
    g(f"s_and_b32 {sr(sT[0])}, s2, 7")
    g(f"s_bfe_u32 {sr(sT[1])}, s2, 0x20003")
    g(f"s_lshl_b32 {sr(sT[2])}, {sr(sT[1])}, 3")
    g(f"s_or_b32 {sr(sH)}, {sr(sT[0])}, {sr(sT[2])}")
    g(f"s_lshr_b32 {sr(sBP)}, s2, 5")
    g(f"s_lshl_b32 {sr(sT[2])}, {sr(sT[0])}, 2")
    g(f"s_or_b32 {sr(sCS)}, {sr(sT[2])}, {sr(sT[1])}")
    g(f"s_mov_b32 {sr(sSelLo)}, 0x05040100")
    g(f"s_mov_b32 {sr(sSelHi)}, 0x07060302")

def kloads(g, buf, nt=" nt"):
    for t2 in range(2):
        for j in range(4):
            g(f"buffer_load_dwordx4 {vr(buf + 16*t2 + 4*j, 4)}, {vr(vK2 if t2 else vK)}, {sr(sK,4)}, {sr(sPre)} offen offset:{64*j}{nt}")
def vloads(g, buf, nt=" nt"):
    for i in range(8):
        g(f"buffer_load_dwordx4 {vr(buf + 4*i, 4)}, {vr(vV2 if i >= 4 else vV)}, {sr(sV,4)}, {sr(sPre)} offen offset:{1024*(i%4)}{nt}")

def perm_mfma(g, src, accbase, bfrag, first):
    def perms(e):
        T = vVt + 4 * (e & 1)
        sel = sSelHi if (e & 1) else sSelLo
        for t in range(4):
            g(f"v_perm_b32 {vr(T+t)}, {vr(src + 4*(2*t+1) + (e>>1))}, {vr(src + 4*(2*t) + (e>>1))}, {sr(sel)}")
    perms(0)
    for e in range(8):
        if e < 7: perms(e + 1)
        else: g("s_nop 1")
        T = vVt + 4 * (e & 1)
        a = accbase + 4 * e
        c = "0" if first else vr(a, 4)
        g(f"v_mfma_f32_16x16x32_bf16 {vr(a,4)}, {vr(T,4)}, {vr(bfrag,4)}, {c}")

def xlane(g, x, t, op):
    g(f"v_mov_b32 {vr(t)}, {vr(x)}")
    g("s_nop 1")
    g(f"v_permlane16_swap_b32 {vr(t)}, {vr(x)}")
    g(f"{op} {vr(x)}, {vr(x)}, {vr(t)}")
    g(f"v_mov_b32 {vr(t)}, {vr(x)}")
    g("s_nop 1")
    g(f"v_permlane32_swap_b32 {vr(t)}, {vr(x)}")
    g(f"{op} {vr(x)}, {vr(x)}, {vr(t)}")

def block(g, b, name):
    KB, VB = vKB[b], vVB[b]
    if b == 1:
        g(f"s_cmp_eq_u32 {sr(sIter)}, 7")
        g(f"s_cbranch_scc1 L_{name}_kw")
    g("s_waitcnt vmcnt(24)")
    if b == 1:
        g.label(f"L_{name}_kwback")
    for j in range(4):
        for t2 in range(2):
            S = vS1 if t2 else vS0
            c = "0" if j == 0 else vr(S, 4)
            g(f"v_mfma_f32_16x16x32_bf16 {vr(S,4)}, {vr(KB + 16*t2 + 4*j, 4)}, {vr(vQ + 4*j, 4)}, {c}")
    g(f"s_cmp_eq_u32 {sr(sIter)}, 7")
    g(f"s_cbranch_scc1 L_{name}_knp")
    kloads(g, KB)
    g.label(f"L_{name}_kback")
    g(f"v_max3_f32 {vr(vT0)}, {vr(vS0)}, {vr(vS0+1)}, {vr(vS0+2)}")
    g(f"v_max3_f32 {vr(vT1)}, {vr(vS0+3)}, {vr(vS1)}, {vr(vS1+1)}")
    g(f"v_max3_f32 {vr(vT0)}, {vr(vT0)}, {vr(vS1+2)}, {vr(vS1+3)}")
    g(f"v_max_f32 {vr(vT0)}, {vr(vT0)}, {vr(vT1)}")
    xlane(g, vT0, vT1, "v_max_f32")
    g(f"v_mul_f32 {vr(vT0)}, {sr(sC)}, {vr(vT0)}")
    g(f"v_max_f32 {vr(vMn)}, {vr(vM_)}, {vr(vT0)}")
    g(f"v_sub_f32 {vr(vT1)}, {vr(vM_)}, {vr(vMn)}")
    g(f"v_exp_f32 {vr(vAl)}, {vr(vT1)}")
    g(f"v_mov_b32 {vr(vM_)}, {vr(vMn)}")
    for i in range(8):
        g(f"v_fma_f32 {vr(vS0+i)}, {vr(vS0+i)}, {sr(sC)}, -{vr(vMn)}")
    for i in range(8):
        g(f"v_exp_f32 {vr(vS0+i)}, {vr(vS0+i)}")
    g(f"v_mul_f32 {vr(vL)}, {vr(vL)}, {vr(vAl)}")
    for u in range(4):
        g(f"v_cvt_pk_bf16_f32 {vr(vP+u)}, {vr(vS0+2*u)}, {vr(vS0+2*u+1)}")
    g(f"v_add_f32 {vr(vT0)}, {vr(vS0)}, {vr(vS0+1)}")
    g(f"v_add_f32 {vr(vT1)}, {vr(vS0+2)}, {vr(vS0+3)}")
    g(f"v_add_f32 {vr(vS0+4)}, {vr(vS0+4)}, {vr(vS0+5)}")
    g(f"v_add_f32 {vr(vS0+6)}, {vr(vS0+6)}, {vr(vS0+7)}")
    g(f"v_add_f32 {vr(vT0)}, {vr(vT0)}, {vr(vT1)}")
    g(f"v_add_f32 {vr(vS0+4)}, {vr(vS0+4)}, {vr(vS0+6)}")
    g(f"v_add_f32 {vr(vL)}, {vr(vL)}, {vr(vT0)}")
    g(f"v_add_f32 {vr(vL)}, {vr(vL)}, {vr(vS0+4)}")
    for i in range(32):
        g(f"v_mul_f32 {vr(vO+i)}, {vr(vO+i)}, {vr(vAl)}")
    g(f"s_cmp_eq_u32 {sr(sIter)}, 7")
    g(f"s_cbranch_scc1 L_{name}_vw")
    g("s_waitcnt vmcnt(24)")
    g.label(f"L_{name}_vwback")
    perm_mfma(g, VB, vO, vP, False)
    g(f"s_cmp_eq_u32 {sr(sIter)}, 7")
    g(f"s_cbranch_scc1 L_{name}_vnp")
    vloads(g, VB)
    g.label(f"L_{name}_vnp")

def kernelA(g):
    g.raw(".globl attn_kernel\n.p2align 8\n.type attn_kernel,@function")
    g.label("attn_kernel")
    g("s_cmp_ge_u32 s2, 256")
    g("s_cbranch_scc1 L_endA")
    ids(g)
    m, gg = vT0, vT1
    g(f"v_and_b32 {vr(m)}, 15, {vr(vLane)}")
    g(f"v_lshrrev_b32 {vr(gg)}, 4, {vr(vLane)}")
    g(f"v_and_b32 {vr(vK)}, 3, {vr(m)}")
    g(f"v_lshlrev_b32 {vr(vK)}, 2, {vr(vK)}")
    g(f"v_lshrrev_b32 {vr(vK2)}, 2, {vr(m)}")
    g(f"v_add_u32 {vr(vK)}, {vr(vK)}, {vr(vK2)}")
    g(f"v_lshlrev_b32 {vr(vK)}, 8, {vr(vK)}")
    g(f"v_lshl_add_u32 {vr(vK)}, {vr(gg)}, 4, {vr(vK)}")
    g(f"v_add_u32 {vr(vK2)}, 0x1000, {vr(vK)}")
    g(f"v_lshlrev_b32 {vr(vV)}, 4, {vr(vLane)}")
    g(f"v_add_u32 {vr(vV2)}, 0x1000, {vr(vV)}")
    vWq, vX = vM_, vL
    g(f"v_lshlrev_b32 {vr(vWq)}, 16, {vr(gg)}")
    g(f"v_lshl_add_u32 {vr(vWq)}, {vr(m)}, 4, {vr(vWq)}")
    g(f"v_lshlrev_b32 {vr(vX)}, 11, {vr(m)}")
    g(f"v_lshl_add_u32 {vr(vX)}, {vr(gg)}, 4, {vr(vX)}")
    g(f"s_lshl_b32 {sr(sT[0])}, {sr(sBP)}, 15")
    g(f"s_lshl_b32 {sr(sT[1])}, {sr(sW)}, 8")
    g(f"s_add_u32 {sr(sT[0])}, {sr(sT[0])}, {sr(sT[1])}")
    g(f"s_lshl_b32 {sr(sT[1])}, {sr(sW)}, 20")
    g(f"s_lshl_b32 {sr(sT[2])}, {sr(sH)}, 8")
    g(f"s_add_u32 {sr(sT[1])}, {sr(sT[1])}, {sr(sT[2])}")
    g(f"s_lshl_b32 {sr(sT[2])}, {sr(sBP)}, 6")
    g(f"s_add_u32 {sr(sT[2])}, {sr(sT[2])}, {sr(sH)}")
    g(f"s_lshl_b32 {sr(sPre)}, {sr(sT[2])}, 19")
    g(f"s_lshl_b32 {sr(sT[2])}, {sr(sW)}, 13")
    g(f"s_add_u32 {sr(sPre)}, {sr(sPre)}, {sr(sT[2])}")
    g(f"s_mov_b32 {sr(sC)}, {f32bits(SCALE):#x}")
    g(f"s_mov_b32 {sr(sMask)}, 0x00ff00ff")
    g(f"s_mov_b32 {sr(sMask+1)}, 0x00ff00ff")
    g("s_waitcnt lgkmcnt(0)")
    srd(g, sX, 4, 262144)
    srd(g, sWQ, 10, 8388608)
    srd(g, sK, 6, 0x10000000)
    srd(g, sV, 8, 0x10000000)
    srd(g, sO, 18, 1048576)
    for s in range(4):
        g(f"buffer_load_dwordx4 {vr(vQ+4*s,4)}, {vr(vX)}, {sr(sX,4)}, {sr(sT[0])} offen offset:{64*s}")
    stage = [vVB[0], vKB[1], vVB[1], vSP]
    def wqloads(s):
        for i in range(8):
            o = (32 * s + i) * 8192
            if o:
                g(f"s_add_u32 {sr(sT[3])}, {sr(sT[1])}, {o:#x}")
                so = sT[3]
            else: so = sT[1]
            g(f"buffer_load_dwordx4 {vr(stage[s]+4*i,4)}, {vr(vWq)}, {sr(sWQ,4)}, {sr(so)} offen")
    wqloads(0)
    kloads(g, vKB[0])
    wqloads(1); wqloads(2); wqloads(3)
    g("s_waitcnt vmcnt(32)")
    perm_mfma(g, stage[0], vO, vQ + 0, True)
    vloads(g, vVB[0])
    g(f"s_add_u32 {sr(sPre)}, {sr(sPre)}, 0x10000")
    g("s_waitcnt vmcnt(24)")
    perm_mfma(g, stage[1], vO, vQ + 4, False)
    kloads(g, vKB[1])
    g("s_waitcnt vmcnt(24)")
    perm_mfma(g, stage[2], vO, vQ + 8, False)
    vloads(g, vVB[1])
    g(f"s_add_u32 {sr(sPre)}, {sr(sPre)}, 0x10000")
    g("s_waitcnt vmcnt(24)")
    perm_mfma(g, stage[3], vO, vQ + 12, False)
    vA = vS0
    g(f"s_lshl_b32 {sr(sT[0])}, {sr(sW)}, 13")
    g(f"v_add_u32 {vr(vA)}, {sr(sT[0])}, {vr(vV)}")
    g("s_nop 7")
    for e in range(8):
        g(f"ds_write_b128 {vr(vA)}, {vr(vO+4*e,4)} offset:{QP + 1024*e}")
    g(f"s_lshl_b32 {sr(sT[0])}, {sr(sW)}, 10")
    g(f"v_add_u32 {vr(vA)}, {sr(sT[0])}, {vr(vV)}")
    g("s_waitcnt lgkmcnt(0)")
    g("s_barrier")
    for p in range(8):
        g(f"ds_read_b128 {vr(vO+4*p,4)}, {vr(vA)} offset:{QP + 8192*p}")
    g(f"v_and_b32 {vr(vT0)}, 15, {vr(vLane)}")
    g(f"v_lshrrev_b32 {vr(vT1)}, 4, {vr(vLane)}")
    g(f"v_mul_u32_u24 {vr(vA+1)}, {QFS}, {vr(vT0)}")
    g(f"v_lshl_add_u32 {vr(vA+1)}, {vr(vT1)}, 6, {vr(vA+1)}")
    g(f"s_lshl_b32 {sr(sT[0])}, {sr(sW)}, 1")
    g(f"s_add_u32 {sr(sT[0])}, {sr(sT[0])}, {QF}")
    g(f"v_add_u32 {vr(vA+1)}, {sr(sT[0])}, {vr(vA+1)}")
    g("s_waitcnt lgkmcnt(0)")
    for p in (4, 2, 1):
        for q in range(p):
            for r in range(4):
                g(f"v_add_f32 {vr(vO+4*q+r)}, {vr(vO+4*q+r)}, {vr(vO+4*(q+p)+r)}")
    g(f"v_cvt_pk_bf16_f32 {vr(vO+4)}, {vr(vO)}, {vr(vO+1)}")
    g(f"v_cvt_pk_bf16_f32 {vr(vO+5)}, {vr(vO+2)}, {vr(vO+3)}")
    g(f"ds_write_b16 {vr(vA+1)}, {vr(vO+4)} offset:0")
    g(f"ds_write_b16_d16_hi {vr(vA+1)}, {vr(vO+4)} offset:16")
    g(f"ds_write_b16 {vr(vA+1)}, {vr(vO+5)} offset:32")
    g(f"ds_write_b16_d16_hi {vr(vA+1)}, {vr(vO+5)} offset:48")
    g("s_waitcnt lgkmcnt(0)")
    g("s_barrier")
    g(f"s_mov_b32 {sr(sIter)}, 0")
    g(f"s_mov_b32 {sr(sBI)}, 0")
    g.label("L_batch")
    g(f"v_and_b32 {vr(vT0)}, 7, {vr(vLane)}")
    g(f"v_lshrrev_b32 {vr(vT1)}, 4, {vr(vLane)}")
    g(f"v_mul_u32_u24 {vr(vT0)}, {QFS}, {vr(vT0)}")
    g(f"v_lshl_add_u32 {vr(vT0)}, {vr(vT1)}, 4, {vr(vT0)}")
    g(f"s_mul_i32 {sr(sT[0])}, {sr(sBI)}, {8*QFS}")
    g(f"s_add_u32 {sr(sT[0])}, {sr(sT[0])}, {QF}")
    g(f"v_add_u32 {vr(vT0)}, {sr(sT[0])}, {vr(vT0)}")
    for j in range(4):
        g(f"ds_read_b128 {vr(vQ+4*j,4)}, {vr(vT0)} offset:{64*j}")
    g(f"v_mov_b32 {vr(vM_)}, 0xff7fffff")
    g(f"v_mov_b32 {vr(vL)}, 0")
    for i in range(32):
        g(f"v_mov_b32 {vr(vO+i)}, 0")
    g("s_waitcnt lgkmcnt(0)")
    g.label("L_body")
    block(g, 0, "A")
    g(f"s_add_u32 {sr(sPre)}, {sr(sPre)}, 0x10000")
    block(g, 1, "B")
    g(f"s_cmp_eq_u32 {sr(sIter)}, 2")
    g(f"s_cselect_b32 {sr(sT[0])}, {0x1000000 - 0x80000:#x}, 0")
    g(f"s_add_u32 {sr(sPre)}, {sr(sPre)}, 0x10000")
    g(f"s_add_u32 {sr(sPre)}, {sr(sPre)}, {sr(sT[0])}")
    g(f"s_add_u32 {sr(sIter)}, {sr(sIter)}, 1")
    g(f"s_and_b32 {sr(sT[0])}, {sr(sIter)}, 3")
    g(f"s_cmp_lg_u32 {sr(sT[0])}, 0")
    g("s_cbranch_scc1 L_body")
    xlane(g, vL, vT1, "v_add_f32")
    vA = vS0
    g(f"v_and_b32 {vr(vT0)}, 15, {vr(vLane)}")
    g(f"v_lshrrev_b32 {vr(vT1)}, 4, {vr(vLane)}")
    g(f"v_mul_u32_u24 {vr(vA)}, {CBQ}, {vr(vT0)}")
    g(f"v_lshl_add_u32 {vr(vA)}, {vr(vT1)}, 7, {vr(vA)}")
    g(f"s_mul_i32 {sr(sT[0])}, {sr(sW)}, {CBW}")
    g(f"v_add_u32 {vr(vA)}, {sr(sT[0])}, {vr(vA)}")
    g(f"s_lshl_b32 {sr(sT[0])}, {sr(sW)}, 2")
    g(f"s_add_u32 {sr(sT[0])}, {sr(sT[0])}, {ML}")
    g(f"v_lshlrev_b32 {vr(vA+1)}, 6, {vr(vT0)}")
    g(f"v_add_u32 {vr(vA+1)}, {sr(sT[0])}, {vr(vA+1)}")
    g(f"s_mov_b64 exec, {sr(sMask,2)}")
    for e in range(8):
        g(f"ds_write_b128 {vr(vA)}, {vr(vO+4*e,4)} offset:{CB + 16*e}")
    g("s_mov_b64 exec, 0xff")
    g(f"ds_write_b32 {vr(vA+1)}, {vr(vM_)}")
    g(f"ds_write_b32 {vr(vA+1)}, {vr(vL)} offset:32")
    g("s_mov_b64 exec, -1")
    g(f"s_lshl_b32 {sr(sT[0])}, {sr(sW)}, 6")
    g(f"s_add_u32 {sr(sT[0])}, {sr(sT[0])}, {ML}")
    g(f"v_mov_b32 {vr(vA+1)}, {sr(sT[0])}")
    g(f"s_mul_i32 {sr(sT[0])}, {sr(sW)}, {CBQ}")
    g(f"v_lshlrev_b32 {vr(vA)}, 3, {vr(vLane)}")
    g(f"v_add_u32 {vr(vA)}, {sr(sT[0])}, {vr(vA)}")
    g("s_waitcnt lgkmcnt(0)")
    g("s_barrier")
    mm = vQ
    for i in range(4):
        g(f"ds_read_b128 {vr(mm+4*i,4)}, {vr(vA+1)} offset:{16*i}")
    for p in range(8):
        g(f"ds_read_b64 {vr(vO+2*p,2)}, {vr(vA)} offset:{CB + CBW*p}")
    g("s_waitcnt lgkmcnt(8)")
    g(f"v_max3_f32 {vr(vT0)}, {vr(mm)}, {vr(mm+1)}, {vr(mm+2)}")
    g(f"v_max3_f32 {vr(vT1)}, {vr(mm+3)}, {vr(mm+4)}, {vr(mm+5)}")
    g(f"v_max3_f32 {vr(vT0)}, {vr(vT0)}, {vr(mm+6)}, {vr(mm+7)}")
    g(f"v_max_f32 {vr(vT0)}, {vr(vT0)}, {vr(vT1)}")
    for p in range(8):
        g(f"v_sub_f32 {vr(mm+p)}, {vr(mm+p)}, {vr(vT0)}")
    for p in range(8):
        g(f"v_exp_f32 {vr(mm+p)}, {vr(mm+p)}")
    g("s_nop 0")
    g(f"v_mul_f32 {vr(vT1)}, {vr(mm)}, {vr(mm+8)}")
    for p in range(1, 8):
        g(f"v_fmac_f32 {vr(vT1)}, {vr(mm+p)}, {vr(mm+8+p)}")
    g(f"v_rcp_f32 {vr(vT1)}, {vr(vT1)}")
    g("s_waitcnt lgkmcnt(0)")
    g(f"v_mul_f32 {vr(vS1)}, {vr(mm)}, {vr(vO)}")
    g(f"v_mul_f32 {vr(vS1+1)}, {vr(mm)}, {vr(vO+1)}")
    for p in range(1, 8):
        g(f"v_fmac_f32 {vr(vS1)}, {vr(mm+p)}, {vr(vO+2*p)}")
        g(f"v_fmac_f32 {vr(vS1+1)}, {vr(mm+p)}, {vr(vO+2*p+1)}")
    g(f"v_mul_f32 {vr(vS1)}, {vr(vS1)}, {vr(vT1)}")
    g(f"v_mul_f32 {vr(vS1+1)}, {vr(vS1+1)}, {vr(vT1)}")
    g(f"v_cvt_pk_bf16_f32 {vr(vS1)}, {vr(vS1)}, {vr(vS1+1)}")
    g(f"s_lshl_b32 {sr(sT[0])}, {sr(sBP)}, 1")
    g(f"s_add_u32 {sr(sT[0])}, {sr(sT[0])}, {sr(sBI)}")
    g(f"s_lshl_b32 {sr(sT[0])}, {sr(sT[0])}, 3")
    g(f"s_add_u32 {sr(sT[0])}, {sr(sT[0])}, {sr(sW)}")
    g(f"s_lshl_b32 {sr(sT[0])}, {sr(sT[0])}, 13")
    g(f"s_lshl_b32 {sr(sT[1])}, {sr(sH)}, 8")
    g(f"s_add_u32 {sr(sT[0])}, {sr(sT[0])}, {sr(sT[1])}")
    g(f"v_lshlrev_b32 {vr(vT0)}, 2, {vr(vLane)}")
    g(f"buffer_store_dword {vr(vS1)}, {vr(vT0)}, {sr(sO,4)}, {sr(sT[0])} offen")
    g(f"s_cmp_eq_u32 {sr(sIter)}, 8")
    g("s_cbranch_scc1 L_endA")
    g("s_barrier")
    g(f"s_mov_b32 {sr(sBI)}, 1")
    g("s_branch L_batch")
    for name, vw in (("A", 16), ("B", 0)):
        g.label(f"L_{name}_knp")
        g("s_nop 7")
        g(f"s_branch L_{name}_kback")
        g.label(f"L_{name}_vw")
        g(f"s_waitcnt vmcnt({vw})")
        g(f"s_branch L_{name}_vwback")
        if name == "B":
            g.label("L_B_kw")
            g("s_waitcnt vmcnt(8)")
            g("s_branch L_B_kwback")
    g.label("L_endA")
    g("s_endpgm")

def kernelB(g):
    g.raw(".globl oproj_kernel\n.p2align 8\n.type oproj_kernel,@function")
    g.label("oproj_kernel")
    g("s_cmp_ge_u32 s2, 256")
    g("s_cbranch_scc1 L_endB")
    ids(g)
    vW = 64; vB = 192; vAcc = 32
    m, gg = vT0, vT1
    vWo, vOo = 1, 2
    g(f"v_and_b32 {vr(m)}, 15, {vr(vLane)}")
    g(f"v_lshrrev_b32 {vr(gg)}, 4, {vr(vLane)}")
    g(f"v_lshlrev_b32 {vr(vWo)}, 12, {vr(gg)}")
    g(f"v_lshl_add_u32 {vr(vWo)}, {vr(m)}, 2, {vr(vWo)}")
    g(f"v_lshlrev_b32 {vr(vOo)}, 13, {vr(m)}")
    g(f"v_lshl_add_u32 {vr(vOo)}, {vr(gg)}, 4, {vr(vOo)}")
    g(f"s_lshl_b32 {sr(sT[0])}, {sr(sW)}, 20")
    g(f"s_lshl_b32 {sr(sT[1])}, {sr(sCS)}, 6")
    g(f"s_add_u32 {sr(sT[0])}, {sr(sT[0])}, {sr(sT[1])}")
    g(f"s_lshl_b32 {sr(sT[1])}, {sr(sBP)}, 17")
    g(f"s_lshl_b32 {sr(sT[2])}, {sr(sW)}, 10")
    g(f"s_add_u32 {sr(sT[1])}, {sr(sT[1])}, {sr(sT[2])}")
    g("s_waitcnt lgkmcnt(0)")
    srd(g, sWO, 12, 8388608)
    srd(g, sO, 18, 1048576)
    srd(g, sOUT, 14, 262144)
    for s in range(16):
        g(f"buffer_load_dwordx4 {vr(vB+4*s,4)}, {vr(vOo)}, {sr(sO,4)}, {sr(sT[1])} offen offset:{64*s}")
    def wloads(s):
        for i4 in range(4):
            o = (32 * s + 8 * i4) * 2048
            if o:
                g(f"s_add_u32 {sr(sT[3])}, {sr(sT[0])}, {o:#x}")
                so = sT[3]
            else: so = sT[0]
            for hi in range(2):
                i = i4 + 4 * hi
                g(f"buffer_load_dword {vr(vW+8*s+i)}, {vr(vWo)}, {sr(sWO,4)}, {sr(so)} offen offset:{2048*hi}")
    NPRE = 5
    for s in range(NPRE): wloads(s)
    for s in range(16):
        rem = min(16, s + NPRE) - s - 1
        g(f"s_waitcnt vmcnt({8*rem})")
        for u in range(2):
            T = vVt + 4 * u
            for t in range(4):
                g(f"v_perm_b32 {vr(T+t)}, {vr(vW+8*s+2*t+1)}, {vr(vW+8*s+2*t)}, {sr(sSelHi if u else sSelLo)}")
        g("s_nop 1")
        for u in range(2):
            c = "0" if s == 0 else vr(vAcc + 4*u, 4)
            g(f"v_mfma_f32_16x16x32_bf16 {vr(vAcc+4*u,4)}, {vr(vVt+4*u,4)}, {vr(vB+4*s,4)}, {c}")
        if s + NPRE < 16: wloads(s + NPRE)
    RS = 144; RW = 16 * RS
    vA = vS0
    g(f"v_mul_u32_u24 {vr(vA)}, {RS}, {vr(m)}")
    g(f"v_lshl_add_u32 {vr(vA)}, {vr(gg)}, 5, {vr(vA)}")
    g(f"s_mul_i32 {sr(sT[0])}, {sr(sW)}, {RW}")
    g(f"v_add_u32 {vr(vA)}, {sr(sT[0])}, {vr(vA)}")
    g("s_nop 7")
    g(f"ds_write_b128 {vr(vA)}, {vr(vAcc,4)}")
    g(f"ds_write_b128 {vr(vA)}, {vr(vAcc+4,4)} offset:16")
    g(f"v_and_b32 {vr(vA+1)}, 1, {vr(gg)}")
    g(f"s_lshl_b32 {sr(sT[0])}, {sr(sW)}, 1")
    g(f"v_add_u32 {vr(vA+1)}, {sr(sT[0])}, {vr(vA+1)}")
    g(f"v_mul_u32_u24 {vr(vA+2)}, {RS}, {vr(vA+1)}")
    g(f"v_lshrrev_b32 {vr(vA+3)}, 2, {vr(m)}")
    g(f"v_lshl_add_u32 {vr(vA+2)}, {vr(vA+3)}, 5, {vr(vA+2)}")
    g(f"v_and_b32 {vr(vA+3)}, 3, {vr(m)}")
    g(f"v_lshl_add_u32 {vr(vA+2)}, {vr(vA+3)}, 2, {vr(vA+2)}")
    g("s_waitcnt lgkmcnt(0)")
    g("s_barrier")
    for p in range(8):
        g(f"ds_read_b32 {vr(vW+2*p)}, {vr(vA+2)} offset:{RW*p}")
        g(f"ds_read_b32 {vr(vW+2*p+1)}, {vr(vA+2)} offset:{RW*p+16}")
    g(f"v_lshlrev_b32 {vr(vA+1)}, 11, {vr(vA+1)}")
    g(f"v_lshl_add_u32 {vr(vA+1)}, {vr(m)}, 2, {vr(vA+1)}")
    g(f"s_lshl_b32 {sr(sT[0])}, {sr(sBP)}, 15")
    g(f"s_lshl_b32 {sr(sT[1])}, {sr(sCS)}, 6")
    g(f"s_add_u32 {sr(sT[0])}, {sr(sT[0])}, {sr(sT[1])}")
    g("s_waitcnt lgkmcnt(0)")
    for p in (4, 2, 1):
        for q in range(p):
            for u in range(2):
                g(f"v_add_f32 {vr(vW+2*q+u)}, {vr(vW+2*q+u)}, {vr(vW+2*(q+p)+u)}")
    g(f"v_cvt_pk_bf16_f32 {vr(vW)}, {vr(vW)}, {vr(vW+1)}")
    g("s_mov_b32 exec_hi, 0")
    g(f"buffer_store_dword {vr(vW)}, {vr(vA+1)}, {sr(sOUT,4)}, {sr(sT[0])} offen")
    g.label("L_endB")
    g("s_endpgm")

def desc(g, name, nv, ns):
    g.raw(f".amdhsa_kernel {name}")
    g.raw(f"  .amdhsa_next_free_vgpr {nv}\n  .amdhsa_next_free_sgpr {ns}\n  .amdhsa_accum_offset {nv}")
    g.raw("  .amdhsa_group_segment_fixed_size 0\n  .amdhsa_kernarg_size 64\n  .amdhsa_user_sgpr_count 2")
    g.raw("  .amdhsa_user_sgpr_kernarg_segment_ptr 1\n  .amdhsa_system_sgpr_workgroup_id_x 1")
    g.raw("  .amdhsa_float_denorm_mode_32 3\n  .amdhsa_float_denorm_mode_16_64 3")
    g.raw(".end_amdhsa_kernel")

g = G()
g.raw(f"; @launch kernel=attn_kernel grid=(256,1,1) block=(512,1,1) lds={LDS_A}")
g.raw(f"; @launch kernel=oproj_kernel grid=(256,1,1) block=(512,1,1) lds={8*16*144}")
g.raw('.amdgcn_target "amdgcn-amd-amdhsa--gfx950"\n.text')
kernelA(g)
kernelB(g)
g.raw('.section .rodata,"a"\n.p2align 6')
desc(g, "attn_kernel", 256, 80)
g.raw(".p2align 6")
desc(g, "oproj_kernel", 256, 80)
open(sys.argv[1], "w").write(g.text())
```

```python
import sys, math, struct, os

def f32bits(x): return struct.unpack("<I", struct.pack("<f", x))[0]
OPT = dict(kv.split("=") for kv in sys.argv[2:])
W = int(OPT.get("W", 3))
WQ = int(OPT.get("WQ", 8))
DBG = int(OPT.get("dbg", 0))
NTW = OPT.get("ntw", " nt")
if NTW == "-": NTW = ""
NTO = OPT.get("nto", "")
if NTO == "nt": NTO = " nt"
OPB = int(OPT.get("opb", 12))
QTAIL = int(OPT.get("qtail", 6))
HMAP = OPT.get("hmap", "A")

class G:
    def __init__(self): self.L = []; self.q = []
    def __call__(self, s): self.L.append("  " + s)
    def label(self, s): self.L.append(s + ":")
    def raw(self, s): self.L.append(s)
    def text(self): return "\n".join(self.L) + "\n"
    def vm(self, s, tag):
        self(s); self.q.append(tag)
    def wait_idx(self, idx):
        n = len(self.q) - 1 - idx
        assert n >= 0
        self(f"s_waitcnt vmcnt({min(n,63)})")
        if n <= 63: self.q = self.q[idx + 1:]
    def wait_tag(self, tag):
        idx = [i for i, t in enumerate(self.q) if t == tag]
        if idx: self.wait_idx(idx[-1])
    def throttle(self, w, pred=lambda t: True):
        idx = [i for i, t in enumerate(self.q) if pred(t)]
        if len(idx) >= w: self.wait_idx(idx[-w])

def vr(a, n=1): return f"v{a}" if n == 1 else f"v[{a}:{a+n-1}]"
def sr(a, n=1): return f"s{a}" if n == 1 else f"s[{a}:{a+n-1}]"

sK, sV, sWQ, sX, sWO, sO, sOUT, sDBG = 20, 24, 28, 32, 36, 40, 44, 48
sW, sH, sBP, sCS, sCur, sNxt, sSelLo, sSelHi, sC = 52, 53, 54, 55, 56, 57, 58, 59, 60
sT = [61, 62, 63, 64, 65, 66, 67, 68, 69]
sMask = 70
sBI, sN, sBase, sRot, sWoB, sOB = 72, 73, 74, 75, 78, 79
sSt = 80
vK, vK2, vV, vV2 = 1, 2, 3, 4
vM_, vL, vAl, vT0, vT1, vMn, vLane = 5, 6, 7, 8, 9, 10, 11
vP = 12; vY = 16; vVt = 24; vQ = 32; vO = 40; vD = 72; vKB = 104; vVB = 136; vSP = 168
vK1 = 168; vV1 = 200
QP = 0
WL = 0
CB = 98304; CBQ = 544; CBW = 8 * CBQ
ML = CB + 8 * CBW
QF = ML + 512; QFS = 272
RB = CB; RBS = 144; RBW = 8 * RBS
LDS = QF + 16 * QFS
SCALE = (128 ** -0.5) * math.log2(math.e)
LDSK = [1, 3, 5, 7, 9, 11]
REGK = [0, 2, 4, 6, 8, 10, 12, 13, 14, 15]
def wa(j): return vSP + 4 + 8 * j
def wb(j): return vSP + 8 + 8 * j
def A0(j): return vSP if j == 0 else wa(j - 1)
def A1(j): return wb(j)
vLT = [wa(9), 252]

def stamp(g, i):
    if not DBG: return
    g("s_memrealtime s[76:77]")
    g("s_waitcnt lgkmcnt(0)")
    g(f"s_mov_b32 {sr(sSt+i)}, s76")
def stamp_bi(g, i):
    if not DBG: return
    g("s_memrealtime s[76:77]")
    g("s_waitcnt lgkmcnt(0)")
    g(f"s_cmp_eq_u32 {sr(sBI)}, 0")
    g(f"s_cselect_b32 {sr(sSt+i)}, s76, {sr(sSt+i)}")
    g(f"s_cselect_b32 {sr(sSt+i+1)}, {sr(sSt+i+1)}, s76")
def stamp_flush(g, n):
    if not DBG: return
    g("s_mov_b32 s96, s18"); g("s_mov_b32 s97, s19"); g("s_mov_b32 s98, 0x400000"); g("s_mov_b32 s99, 0x00020000")
    g("s_lshl_b32 s76, s2, 3"); g(f"s_add_u32 s76, s76, {sr(sW)}"); g("s_lshl_b32 s76, s76, 6"); g("s_add_u32 s76, s76, 0x200000")
    g("s_mov_b64 exec, 1")
    for i in range(n):
        g(f"v_mov_b32 v1, {sr(sSt+i)}")
        g(f"buffer_store_dword v1, off, s[96:99], s76 offset:{4*i}")
    g("s_mov_b64 exec, -1")

def srd(g, d, p, size):
    g(f"s_mov_b32 {sr(d)}, {sr(p)}")
    g(f"s_mov_b32 {sr(d+1)}, {sr(p+1)}")
    g(f"s_mov_b32 {sr(d+2)}, {size:#x}")
    g(f"s_mov_b32 {sr(d+3)}, 0x00020000")

def kload(buf, i, so):
    G_, j = i >> 1, i & 1
    return f"buffer_load_dwordx4 {vr(buf+4*i,4)}, {vr(vK2 if G_ >= 2 else vK)}, {sr(sK,4)}, {sr(so)} offen offset:{(G_&1)*2048 + 128*j} nt"
def vload(buf, i, so):
    return f"buffer_load_dwordx4 {vr(buf+4*i,4)}, {vr(vV2 if i >= 4 else vV)}, {sr(sV,4)}, {sr(so)} offen offset:{1024*(i%4)} nt"

def advance(g):
    g(f"s_mov_b32 {sr(sCur)}, {sr(sNxt)}")
    g(f"s_add_u32 {sr(sN)}, {sr(sN)}, 1")
    g(f"s_add_u32 {sr(sRot)}, {sr(sRot)}, 0x10000")
    g(f"s_and_b32 {sr(sRot)}, {sr(sRot)}, 0x70000")
    g(f"s_cmp_eq_u32 {sr(sN)}, 7")
    g(f"s_cselect_b32 {sr(sT[0])}, 0x1000000, 0")
    g(f"s_add_u32 {sr(sBase)}, {sr(sBase)}, {sr(sT[0])}")
    g(f"s_add_u32 {sr(sNxt)}, {sr(sBase)}, {sr(sRot)}")

def perm_mfma(g, rows, accbase, bfrag, first, es=range(8)):
    es = list(es)
    def perms(e):
        T = vVt + 4 * (e & 1)
        sel = sSelHi if (e & 1) else sSelLo
        for t in range(4):
            g(f"v_perm_b32 {vr(T+t)}, {vr(rows[2*t+1] + (e>>1))}, {vr(rows[2*t] + (e>>1))}, {sr(sel)}")
    perms(es[0])
    for n, e in enumerate(es):
        if n + 1 < len(es): perms(es[n + 1])
        else: g("s_nop 1")
        T = vVt + 4 * (e & 1)
        a = accbase + 4 * e
        c = "0" if first else vr(a, 4)
        g(f"v_mfma_f32_16x16x32_bf16 {vr(a,4)}, {vr(T,4)}, {vr(bfrag,4)}, {c}")

def xlane(g, x, t, op):
    g(f"v_mov_b32 {vr(t)}, {vr(x)}")
    g("s_nop 1")
    g(f"v_permlane16_swap_b32 {vr(t)}, {vr(x)}")
    g(f"{op} {vr(x)}, {vr(x)}, {vr(t)}")
    g(f"v_mov_b32 {vr(t)}, {vr(x)}")
    g("s_nop 1")
    g(f"v_permlane32_swap_b32 {vr(t)}, {vr(x)}")
    g(f"{op} {vr(x)}, {vr(x)}, {vr(t)}")

def qk(g, KB):
    def M(D, G_):
        for j in range(2):
            c = "0" if j == 0 else vr(D, 16)
            g(f"v_mfma_f32_32x32x16_bf16 {vr(D,16)}, {vr(KB + 4*(2*G_+j), 4)}, {vr(vQ + 4*j, 4)}, {c}")
    def red(D, G_):
        for i in range(4):
            g(f"v_add_f32_dpp {vr(D+4*i)}, {vr(D+4*i+1)}, {vr(D+4*i)} row_ror:8 row_mask:0x5 bank_mask:0xf")
            g(f"v_add_f32_dpp {vr(D+4*i)}, {vr(D+4*i+3)}, {vr(D+4*i+2)} row_ror:8 row_mask:0xa bank_mask:0xf")
        g("s_nop 1")
        g(f"v_permlane16_swap_b32 {vr(D)}, {vr(D+4)}")
        g(f"v_permlane16_swap_b32 {vr(D+8)}, {vr(D+12)}")
        g(f"v_add_f32 {vr(vY+2*G_)}, {vr(D)}, {vr(D+4)}")
        g(f"v_add_f32 {vr(vY+2*G_+1)}, {vr(D+8)}, {vr(D+12)}")
    D0, D1 = vD, vD + 16
    M(D0, 0); M(D1, 1)
    g("s_nop 9")
    red(D0, 0); M(D0, 2); red(D1, 1); M(D1, 3); red(D0, 2); red(D1, 3)

def sm1(g):
    Y = vY
    g(f"v_max3_f32 {vr(vT0)}, {vr(Y)}, {vr(Y+1)}, {vr(Y+2)}")
    g(f"v_max3_f32 {vr(vT1)}, {vr(Y+3)}, {vr(Y+4)}, {vr(Y+5)}")
    g(f"v_max3_f32 {vr(vT0)}, {vr(vT0)}, {vr(Y+6)}, {vr(Y+7)}")
    g(f"v_max_f32 {vr(vT0)}, {vr(vT0)}, {vr(vT1)}")
    xlane(g, vT0, vT1, "v_max_f32")
    g(f"v_mul_f32 {vr(vT0)}, {sr(sC)}, {vr(vT0)}")
    g(f"v_max_f32 {vr(vMn)}, {vr(vM_)}, {vr(vT0)}")
    g(f"v_sub_f32 {vr(vT1)}, {vr(vM_)}, {vr(vMn)}")
    g(f"v_exp_f32 {vr(vAl)}, {vr(vT1)}")
    g(f"v_mov_b32 {vr(vM_)}, {vr(vMn)}")
    for i in range(8):
        g(f"v_fma_f32 {vr(Y+i)}, {vr(Y+i)}, {sr(sC)}, -{vr(vMn)}")
    for i in range(8):
        g(f"v_exp_f32 {vr(Y+i)}, {vr(Y+i)}")
    g(f"v_mul_f32 {vr(vL)}, {vr(vL)}, {vr(vAl)}")
    for u in range(4):
        g(f"v_cvt_pk_bf16_f32 {vr(vP+u)}, {vr(Y+2*u)}, {vr(Y+2*u+1)}")
    g(f"v_add_f32 {vr(vT0)}, {vr(Y)}, {vr(Y+1)}")
    g(f"v_add_f32 {vr(vT1)}, {vr(Y+2)}, {vr(Y+3)}")
    g(f"v_add_f32 {vr(Y+4)}, {vr(Y+4)}, {vr(Y+5)}")
    g(f"v_add_f32 {vr(Y+6)}, {vr(Y+6)}, {vr(Y+7)}")
    g(f"v_add_f32 {vr(vT0)}, {vr(vT0)}, {vr(vT1)}")
    g(f"v_add_f32 {vr(Y+4)}, {vr(Y+4)}, {vr(Y+6)}")
    g(f"v_add_f32 {vr(vL)}, {vr(vL)}, {vr(vT0)}")
    g(f"v_add_f32 {vr(vL)}, {vr(vL)}, {vr(Y+4)}")
def sm2(g):
    for i in range(32):
        g(f"v_mul_f32 {vr(vO+i)}, {vr(vO+i)}, {vr(vAl)}")
def pv(g, VB, es=range(8)):
    perm_mfma(g, [VB + 4 * i for i in range(8)], vO, vP, False, es)

def load_qfrag_reset(g):
    g(f"v_and_b32 {vr(vT0)}, 7, {vr(vLane)}")
    g(f"v_lshrrev_b32 {vr(vT1)}, 3, {vr(vLane)}")
    g(f"v_mul_u32_u24 {vr(vT0)}, {QFS}, {vr(vT0)}")
    g(f"v_lshl_add_u32 {vr(vT0)}, {vr(vT1)}, 4, {vr(vT0)}")
    g(f"s_mul_i32 {sr(sT[0])}, {sr(sBI)}, {8*QFS}")
    g(f"s_add_u32 {sr(sT[0])}, {sr(sT[0])}, {QF}")
    g(f"v_add_u32 {vr(vT0)}, {sr(sT[0])}, {vr(vT0)}")
    for j in range(2):
        g(f"ds_read_b128 {vr(vQ+4*j,4)}, {vr(vT0)} offset:{128*j}")
    g(f"v_mov_b32 {vr(vM_)}, 0xff7fffff")
    g(f"v_mov_b32 {vr(vL)}, 0")
    for i in range(32):
        g(f"v_mov_b32 {vr(vO+i)}, 0")
    g("s_waitcnt lgkmcnt(0)")

def wload(g, s, i, dst, vWo):
    o = (32 * s + 8 * (i & 3)) * 2048
    g(f"s_add_u32 {sr(sT[3])}, {sr(sWoB)}, {o:#x}")
    g.vm(f"buffer_load_dword {vr(dst)}, {vr(vWo)}, {sr(sWO,4)}, {sr(sT[3])} offen offset:{2048*(i>>2)}{NTO}", "W")

def kernel(g):
    NAME = "standalone__mha_block_cached__sampling_kernel"
    g.raw(f".globl {NAME}\n.p2align 8\n.type {NAME},@function")
    g.label(NAME)
    g("s_cmp_ge_u32 s2, 256")
    g("s_cbranch_scc1 L_end")
    g("s_load_dwordx16 s[4:19], s[0:1], 0")
    g(f"v_lshrrev_b32 {vr(vT0)}, 6, v0")
    g(f"v_and_b32 {vr(vLane)}, 63, v0")
    g(f"v_readfirstlane_b32 {sr(sW)}, {vr(vT0)}")
    g(f"s_and_b32 {sr(sT[0])}, s2, 7")
    g(f"s_bfe_u32 {sr(sT[1])}, s2, 0x20003")
    g(f"s_lshl_b32 {sr(sT[2])}, {sr(sT[0])}, 2")
    g(f"s_or_b32 {sr(sCS)}, {sr(sT[2])}, {sr(sT[1])}")
    if HMAP == "A": g(f"s_and_b32 {sr(sH)}, s2, 31")
    else: g(f"s_mov_b32 {sr(sH)}, {sr(sCS)}")
    g(f"s_lshr_b32 {sr(sBP)}, s2, 5")
    g(f"s_mov_b32 {sr(sSelLo)}, 0x05040100")
    g(f"s_mov_b32 {sr(sSelHi)}, 0x07060302")
    m, gg = vT0, vT1
    g(f"v_and_b32 {vr(m)}, 15, {vr(vLane)}")
    g(f"v_lshrrev_b32 {vr(gg)}, 4, {vr(vLane)}")
    g(f"v_bfe_u32 {vr(vK)}, {vr(vLane)}, 4, 1")
    g(f"v_lshlrev_b32 {vr(vK)}, 10, {vr(vK)}")
    g(f"v_bfe_u32 {vr(vK2)}, {vr(vLane)}, 2, 1")
    g(f"v_lshl_add_u32 {vr(vK)}, {vr(vK2)}, 9, {vr(vK)}")
    g(f"v_bfe_u32 {vr(vK2)}, {vr(vLane)}, 3, 1")
    g(f"v_lshl_add_u32 {vr(vK)}, {vr(vK2)}, 8, {vr(vK)}")
    g(f"v_lshrrev_b32 {vr(vK2)}, 5, {vr(vLane)}")
    g(f"v_lshl_add_u32 {vr(vK)}, {vr(vK2)}, 6, {vr(vK)}")
    g(f"v_and_b32 {vr(vK2)}, 3, {vr(vLane)}")
    g(f"v_lshl_add_u32 {vr(vK)}, {vr(vK2)}, 4, {vr(vK)}")
    g(f"v_add_u32 {vr(vK2)}, 0x1000, {vr(vK)}")
    g(f"v_lshlrev_b32 {vr(vV)}, 4, {vr(vLane)}")
    g(f"v_add_u32 {vr(vV2)}, 0x1000, {vr(vV)}")
    vWq, vX = vM_, vL
    g(f"v_lshlrev_b32 {vr(vWq)}, 16, {vr(gg)}")
    g(f"v_lshl_add_u32 {vr(vWq)}, {vr(m)}, 4, {vr(vWq)}")
    g(f"v_lshlrev_b32 {vr(vX)}, 11, {vr(m)}")
    g(f"v_lshl_add_u32 {vr(vX)}, {vr(gg)}, 4, {vr(vX)}")
    sXo, sWqB = sT[4], sT[5]
    g(f"s_lshl_b32 {sr(sXo)}, {sr(sBP)}, 15")
    g(f"s_lshl_b32 {sr(sT[1])}, {sr(sW)}, 8")
    g(f"s_add_u32 {sr(sXo)}, {sr(sXo)}, {sr(sT[1])}")
    g(f"s_lshl_b32 {sr(sT[1])}, {sr(sW)}, 20")
    g(f"s_lshl_b32 {sr(sT[2])}, {sr(sH)}, 8")
    g(f"s_add_u32 {sr(sWqB)}, {sr(sT[1])}, {sr(sT[2])}")
    g(f"s_lshl_b32 {sr(sT[2])}, {sr(sCS)}, 6")
    g(f"s_add_u32 {sr(sWoB)}, {sr(sT[1])}, {sr(sT[2])}")
    g(f"s_lshl_b32 {sr(sT[2])}, {sr(sBP)}, 6")
    g(f"s_add_u32 {sr(sT[2])}, {sr(sT[2])}, {sr(sH)}")
    g(f"s_lshl_b32 {sr(sBase)}, {sr(sT[2])}, 19")
    g(f"s_lshl_b32 {sr(sT[2])}, {sr(sW)}, 13")
    g(f"s_add_u32 {sr(sBase)}, {sr(sBase)}, {sr(sT[2])}")
    g(f"s_lshl_b32 {sr(sRot)}, {sr(sBP)}, 16")
    g(f"s_add_u32 {sr(sNxt)}, {sr(sBase)}, {sr(sRot)}")
    g(f"s_mov_b32 {sr(sN)}, -1")
    advance(g)
    g(f"s_mov_b32 {sr(sC)}, {f32bits(SCALE):#x}")
    g(f"s_mov_b32 {sr(sMask)}, 0x00ff00ff")
    g(f"s_mov_b32 {sr(sMask+1)}, 0x00ff00ff")
    g(f"s_mov_b32 {sr(sBI)}, 0")
    g("s_waitcnt lgkmcnt(0)")
    stamp(g, 0)
    srd(g, sX, 4, 262144)
    srd(g, sWQ, 10, 8388608)
    srd(g, sK, 6, 0x10000000)
    srd(g, sV, 8, 0x10000000)
    stgA = [vD + 4 * i for i in range(8)]
    stgB = [232 + 4 * i for i in range(6)] + [vY, vY + 4]
    stg = [stgA, stgB]
    def xload(s):
        g.vm(f"buffer_load_dwordx4 {vr(vQ+4*(s&1),4)}, {vr(vX)}, {sr(sX,4)}, {sr(sXo)} offen offset:{64*s}", f"x{s}")
    def wqload(s, i):
        g(f"s_add_u32 {sr(sT[3])}, {sr(sWqB)}, {(32*s+i)*8192:#x}")
        g.vm(f"buffer_load_dwordx4 {vr(stg[s&1][i],4)}, {vr(vWq)}, {sr(sWQ,4)}, {sr(sT[3])} offen{NTW}", f"wq{s}")
    kv = [(kload(vKB, i, sCur), "K0") for i in range(8)] + [(vload(vVB, i, sCur), "V0") for i in range(8)] + \
         [(kload(vK1, i, sNxt), "K1") for i in range(8)] + [(vload(vV1, i, sNxt), "V1") for i in range(8)]
    def qcomp(s):
        g.wait_tag(f"wq{s}"); g.wait_tag(f"x{s}")
        perm_mfma(g, stg[s & 1], vO, vQ + 4 * (s & 1), s == 0)
    xload(0); xload(1)
    kvi = 0
    NKV_IN = 32 - QTAIL
    for idx in range(32):
        s, i = idx // 8, idx % 8
        if i == 0 and s >= 2:
            qcomp(s - 2)
            xload(s)
        g.throttle(WQ)
        wqload(s, i)
        while kvi < (idx + 1) * NKV_IN // 32:
            g.throttle(WQ)
            g.vm(*kv[kvi]); kvi += 1
        if idx == 3:
            srd(g, sWO, 12, 8388608)
            srd(g, sO, 18, 1048576)
            srd(g, sOUT, 14, 262144)
            srd(g, sDBG, 16, 256)
    qcomp(2)
    half = kvi + (32 - kvi) // 2
    while kvi < half:
        g.throttle(WQ); g.vm(*kv[kvi]); kvi += 1
    qcomp(3)
    while kvi < 32:
        g.vm(*kv[kvi]); kvi += 1
    stamp(g, 1)
    vA = vY
    g(f"s_lshl_b32 {sr(sT[0])}, {sr(sW)}, 13")
    g(f"v_add_u32 {vr(vA)}, {sr(sT[0])}, {vr(vV)}")
    g("s_nop 7")
    for e in range(8):
        g(f"ds_write_b128 {vr(vA)}, {vr(vO+4*e,4)} offset:{QP + 1024*e}")
    g(f"s_lshl_b32 {sr(sT[0])}, {sr(sW)}, 10")
    g(f"v_add_u32 {vr(vA)}, {sr(sT[0])}, {vr(vV)}")
    g("s_waitcnt lgkmcnt(0)")
    g("s_barrier")
    for p in range(8):
        g(f"ds_read_b128 {vr(vO+4*p,4)}, {vr(vA)} offset:{QP + 8192*p}")
    g(f"v_and_b32 {vr(vT0)}, 15, {vr(vLane)}")
    g(f"v_lshrrev_b32 {vr(vT1)}, 4, {vr(vLane)}")
    g(f"v_mul_u32_u24 {vr(vA+1)}, {QFS}, {vr(vT0)}")
    g(f"v_lshl_add_u32 {vr(vA+1)}, {vr(vT1)}, 6, {vr(vA+1)}")
    g(f"s_lshl_b32 {sr(sT[0])}, {sr(sW)}, 1")
    g(f"s_add_u32 {sr(sT[0])}, {sr(sT[0])}, {QF}")
    g(f"v_add_u32 {vr(vA+1)}, {sr(sT[0])}, {vr(vA+1)}")
    g("s_waitcnt lgkmcnt(0)")
    for p in (4, 2, 1):
        for q in range(p):
            for r in range(4):
                g(f"v_add_f32 {vr(vO+4*q+r)}, {vr(vO+4*q+r)}, {vr(vO+4*(q+p)+r)}")
    g(f"v_cvt_pk_bf16_f32 {vr(vO+4)}, {vr(vO)}, {vr(vO+1)}")
    g(f"v_cvt_pk_bf16_f32 {vr(vO+5)}, {vr(vO+2)}, {vr(vO+3)}")
    g(f"ds_write_b16 {vr(vA+1)}, {vr(vO+4)} offset:0")
    g(f"ds_write_b16_d16_hi {vr(vA+1)}, {vr(vO+4)} offset:16")
    g(f"ds_write_b16 {vr(vA+1)}, {vr(vO+5)} offset:32")
    g(f"ds_write_b16_d16_hi {vr(vA+1)}, {vr(vO+5)} offset:48")
    g("s_waitcnt lgkmcnt(0)")
    g("s_barrier")
    load_qfrag_reset(g)
    stamp(g, 2)
    advance(g)
    isKV = lambda t: t[0] in "KV"
    def kvl(s, tag):
        g.throttle(W, isKV); g.vm(s, tag)
    g.wait_tag("K0"); qk(g, vKB)
    for i in range(3): g.vm(kload(vKB, i, sNxt), "K2")
    sm1(g); sm2(g)
    g.wait_tag("V0"); pv(g, vVB)
    g.wait_tag("K1"); qk(g, vK1)
    sm1(g); sm2(g)
    g.wait_tag("V1"); pv(g, vV1)
    vWo = vSP + 84 + 3
    g(f"v_and_b32 {vr(vT0)}, 15, {vr(vLane)}")
    g(f"v_lshrrev_b32 {vr(vT1)}, 4, {vr(vLane)}")
    g(f"v_lshlrev_b32 {vr(vWo)}, 12, {vr(vT1)}")
    g(f"v_lshl_add_u32 {vr(vWo)}, {vr(vT0)}, 2, {vr(vWo)}")
    wl = []
    for n, s in enumerate(LDSK):
        for i in range(8): wl.append((s, i, vSP + 8 * n + i, "W1"))
    def regdst(j, i): return (wb(j) if (i & 1) else wa(j)) + (i >> 1)
    for j in [6, 7, 8, 9]:
        for i in range(8): wl.append((REGK[j], i, regdst(j, i), "W2"))
    wl.append("procW1")
    for j in range(6):
        for i in range(8): wl.append((REGK[j], i, regdst(j, i), "W2"))
    wi = [0]
    w1_last = [None]
    def procW1():
        idx = [i for i, t in enumerate(g.q) if t == "W1"]
        if idx: g.wait_idx(idx[-1])
        g(f"s_lshl_b32 {sr(sT[0])}, {sr(sW)}, 11")
        g(f"v_add_u32 {vr(vT0)}, {sr(sT[0])}, {vr(vV)}")
        for n in range(6):
            R = vSP + 8 * n
            for u in range(2):
                for t in range(4):
                    g(f"v_perm_b32 {vr(vVt+4*u+t)}, {vr(R+2*t+1)}, {vr(R+2*t)}, {sr(sSelHi if u else sSelLo)}")
            for u in range(2):
                off = WL + 16384 * n + 1024 * u
                if off < 65536:
                    g(f"ds_write_b128 {vr(vT0)}, {vr(vVt+4*u,4)} offset:{off}")
                else:
                    if off == 65536: g(f"v_add_u32 {vr(vT1)}, 0x10000, {vr(vT0)}")
                    g(f"ds_write_b128 {vr(vT1)}, {vr(vVt+4*u,4)} offset:{off-65536}")
            g("s_waitcnt lgkmcnt(0)")
    def wsome(k):
        for _ in range(k):
            if wi[0] >= len(wl): return
            it = wl[wi[0]]; wi[0] += 1
            if it == "procW1":
                procW1(); continue
            s, i, dst, tag = it
            o = (32 * s + 8 * (i & 3)) * 2048
            g(f"s_add_u32 {sr(sT[3])}, {sr(sWoB)}, {o:#x}")
            g.vm(f"buffer_load_dword {vr(dst)}, {vr(vWo)}, {sr(sWO,4)}, {sr(sT[3])} offen offset:{2048*(i>>2)}{NTO}", tag)
    for i in range(3, 8):
        kvl(kload(vKB, i, sNxt), "K2"); wsome(2)
    NPEEL = 6
    for n in range(2, NPEEL):
        advance(g)
        for i in range(8):
            kvl(vload(vVB, i, sCur), f"V{n}"); wsome(2)
            if i == W - 1:
                g.wait_tag(f"K{n}"); qk(g, vKB)
            if i == W: sm1(g)
            if i == W + 1: sm2(g)
        for i in range(8):
            kvl(kload(vKB, i, sNxt), f"K{n+1}"); wsome(2)
            if i == W - 1:
                g.wait_tag(f"V{n}"); pv(g, vVB, range(4))
            if i == W: pv(g, vVB, range(4, 8))
    assert wi[0] >= len(wl), (wi[0], len(wl))
    g.wait_tag("W2")
    for j in range(10):
        for t in range(4):
            g(f"v_perm_b32 {vr(A0(j)+t)}, {vr(wb(j)+t)}, {vr(wa(j)+t)}, {sr(sSelLo)}")
            g(f"v_perm_b32 {vr(wb(j)+t)}, {vr(wb(j)+t)}, {vr(wa(j)+t)}, {sr(sSelHi)}")
    stamp(g, 3)
    g.label("L_top")
    advance(g)
    for i in range(8):
        g(f"s_waitcnt vmcnt({W-1})")
        g(vload(vVB, i, sCur))
        if i == W - 1:
            g.label("L_qk")
            qk(g, vKB)
        if i == W: sm1(g)
        if i == W + 1: sm2(g)
    g(f"s_cmp_eq_u32 {sr(sN)}, 15")
    g("s_cbranch_scc1 L_last")
    for i in range(W):
        g(f"s_waitcnt vmcnt({W-1})")
        g(kload(vKB, i, sNxt))
    g.label("L_pv")
    pv(g, vVB)
    g(f"s_and_b32 {sr(sT[0])}, {sr(sN)}, 7")
    g(f"s_cmp_eq_u32 {sr(sT[0])}, 7")
    g("s_cbranch_scc1 L_hookC")
    g(f"s_cmp_eq_u32 {sr(sN)}, {OPB}")
    g("s_cbranch_scc1 L_hookO")
    for i in range(W, 8):
        g(f"s_waitcnt vmcnt({W-1})")
        g(kload(vKB, i, sNxt))
    g("s_branch L_top")
    g.label("L_last")
    g("s_waitcnt vmcnt(0)")
    g("s_branch L_pv")
    def preissue():
        for i in range(W, 8): g(kload(vKB, i, sNxt))
        advance(g)
        for i in range(W): g(vload(vVB, i, sCur))
    g.label("L_hookC")
    stamp_bi(g, 4)
    g(f"s_cmp_eq_u32 {sr(sBI)}, 1")
    g("s_cbranch_scc1 L_hookC2")
    preissue()
    g.label("L_hookC2")
    xlane(g, vL, vT1, "v_add_f32")
    vA = vY
    g(f"v_and_b32 {vr(vT0)}, 15, {vr(vLane)}")
    g(f"v_lshrrev_b32 {vr(vT1)}, 4, {vr(vLane)}")
    g(f"v_mul_u32_u24 {vr(vA)}, {CBQ}, {vr(vT0)}")
    g(f"v_lshl_add_u32 {vr(vA)}, {vr(vT1)}, 7, {vr(vA)}")
    g(f"s_mul_i32 {sr(sT[0])}, {sr(sW)}, {CBW}")
    g(f"s_add_u32 {sr(sT[0])}, {sr(sT[0])}, {CB}")
    g(f"v_add_u32 {vr(vA)}, {sr(sT[0])}, {vr(vA)}")
    g(f"s_lshl_b32 {sr(sT[0])}, {sr(sW)}, 2")
    g(f"s_add_u32 {sr(sT[0])}, {sr(sT[0])}, {ML}")
    g(f"v_lshlrev_b32 {vr(vA+1)}, 6, {vr(vT0)}")
    g(f"v_add_u32 {vr(vA+1)}, {sr(sT[0])}, {vr(vA+1)}")
    g(f"s_mov_b64 exec, {sr(sMask,2)}")
    for e in range(8):
        g(f"ds_write_b128 {vr(vA)}, {vr(vO+4*e,4)} offset:{16*e}")
    g("s_mov_b64 exec, 0xff")
    g(f"ds_write_b32 {vr(vA+1)}, {vr(vM_)}")
    g(f"ds_write_b32 {vr(vA+1)}, {vr(vL)} offset:32")
    g("s_mov_b64 exec, -1")
    g(f"v_bfe_u32 {vr(vT0)}, {vr(vLane)}, 2, 3")
    g(f"v_lshlrev_b32 {vr(vA+1)}, 6, {vr(vT0)}")
    g(f"v_add_u32 {vr(vA+1)}, {ML}, {vr(vA+1)}")
    g(f"v_mul_u32_u24 {vr(vA)}, {CBQ}, {vr(vT0)}")
    g(f"v_lshrrev_b32 {vr(vT0)}, 5, {vr(vLane)}")
    g(f"v_lshl_add_u32 {vr(vA)}, {vr(vT0)}, 7, {vr(vA)}")
    g(f"v_and_b32 {vr(vT0)}, 3, {vr(vLane)}")
    g(f"v_lshl_add_u32 {vr(vA)}, {vr(vT0)}, 3, {vr(vA)}")
    g(f"s_lshr_b32 {sr(sT[0])}, {sr(sW)}, 2")
    g(f"s_lshl_b32 {sr(sT[0])}, {sr(sT[0])}, 8")
    g(f"s_and_b32 {sr(sT[1])}, {sr(sW)}, 3")
    g(f"s_lshl_b32 {sr(sT[1])}, {sr(sT[1])}, 5")
    g(f"s_add_u32 {sr(sT[0])}, {sr(sT[0])}, {sr(sT[1])}")
    g(f"s_add_u32 {sr(sT[0])}, {sr(sT[0])}, {CB}")
    g(f"v_add_u32 {vr(vA)}, {sr(sT[0])}, {vr(vA)}")
    g("s_waitcnt lgkmcnt(0)")
    g("s_barrier")
    mm = vD
    for i in range(4):
        g(f"ds_read_b128 {vr(mm+4*i,4)}, {vr(vA+1)} offset:{16*i}")
    for p in range(8):
        g(f"ds_read_b64 {vr(vO+2*p,2)}, {vr(vA)} offset:{CBW*p}")
    g(f"s_lshl_b32 {sr(sT[0])}, {sr(sBP)}, 1")
    g(f"s_add_u32 {sr(sT[0])}, {sr(sT[0])}, {sr(sBI)}")
    g(f"s_lshl_b32 {sr(sT[2])}, {sr(sT[0])}, 4")
    g(f"s_lshl_b32 {sr(sT[0])}, {sr(sT[0])}, 16")
    g(f"s_lshl_b32 {sr(sT[1])}, {sr(sH)}, 11")
    g(f"s_add_u32 {sr(sT[0])}, {sr(sT[0])}, {sr(sT[1])}")
    g(f"s_lshl_b32 {sr(sT[1])}, {sr(sW)}, 8")
    g(f"s_add_u32 {sr(sT[0])}, {sr(sT[0])}, {sr(sT[1])}")
    g(f"v_lshlrev_b32 {vr(vA+2)}, 2, {vr(vLane)}")
    g("s_waitcnt lgkmcnt(8)")
    g(f"v_max3_f32 {vr(vT0)}, {vr(mm)}, {vr(mm+1)}, {vr(mm+2)}")
    g(f"v_max3_f32 {vr(vT1)}, {vr(mm+3)}, {vr(mm+4)}, {vr(mm+5)}")
    g(f"v_max3_f32 {vr(vT0)}, {vr(vT0)}, {vr(mm+6)}, {vr(mm+7)}")
    g(f"v_max_f32 {vr(vT0)}, {vr(vT0)}, {vr(vT1)}")
    for p in range(8):
        g(f"v_sub_f32 {vr(mm+p)}, {vr(mm+p)}, {vr(vT0)}")
    for p in range(8):
        g(f"v_exp_f32 {vr(mm+p)}, {vr(mm+p)}")
    g("s_nop 0")
    g(f"v_mul_f32 {vr(vT1)}, {vr(mm)}, {vr(mm+8)}")
    for p in range(1, 8):
        g(f"v_fmac_f32 {vr(vT1)}, {vr(mm+p)}, {vr(mm+8+p)}")
    g(f"v_rcp_f32 {vr(vT1)}, {vr(vT1)}")
    g("s_waitcnt lgkmcnt(0)")
    R0, R1 = vP, vP + 1
    g(f"v_mul_f32 {vr(R0)}, {vr(mm)}, {vr(vO)}")
    g(f"v_mul_f32 {vr(R1)}, {vr(mm)}, {vr(vO+1)}")
    for p in range(1, 8):
        g(f"v_fmac_f32 {vr(R0)}, {vr(mm+p)}, {vr(vO+2*p)}")
        g(f"v_fmac_f32 {vr(R1)}, {vr(mm+p)}, {vr(vO+2*p+1)}")
    g(f"v_mul_f32 {vr(R0)}, {vr(R0)}, {vr(vT1)}")
    g(f"v_mul_f32 {vr(R1)}, {vr(R1)}, {vr(vT1)}")
    g(f"v_cvt_pk_bf16_f32 {vr(R0)}, {vr(R0)}, {vr(R1)}")
    g(f"buffer_store_dword {vr(R0)}, {vr(vA+2)}, {sr(sO,4)}, {sr(sT[0])} offen sc1")
    g("s_waitcnt vmcnt(0)")
    g("s_barrier")
    g(f"s_cmp_lg_u32 {sr(sW)}, 0")
    g("s_cbranch_scc1 L_nosig")
    g(f"v_mov_b32 {vr(vT0)}, 1")
    g("s_mov_b64 exec, 1")
    g(f"buffer_atomic_add {vr(vT0)}, off, {sr(sDBG,4)}, {sr(sT[2])} sc1")
    g("s_mov_b64 exec, -1")
    g.label("L_nosig")
    stamp_bi(g, 6)
    g(f"s_cmp_eq_u32 {sr(sBI)}, 1")
    g(f"s_mov_b32 {sr(sOB)}, 1")
    g("s_cbranch_scc1 L_hookO2")
    g(f"s_mov_b32 {sr(sBI)}, 1")
    load_qfrag_reset(g)
    g("s_branch L_qk")
    g.label("L_hookO")
    preissue()
    g(f"s_mov_b32 {sr(sOB)}, 0")
    g.label("L_hookO2")
    g(f"s_lshl_b32 {sr(sT[0])}, {sr(sBP)}, 1")
    g(f"s_add_u32 {sr(sT[0])}, {sr(sT[0])}, {sr(sOB)}")
    g(f"s_lshl_b32 {sr(sT[2])}, {sr(sT[0])}, 4")
    g(f"s_lshl_b32 {sr(sT[1])}, {sr(sT[0])}, 16")
    g(f"s_lshl_b32 {sr(sT[3])}, {sr(sW)}, 13")
    g(f"s_add_u32 {sr(sT[1])}, {sr(sT[1])}, {sr(sT[3])}")
    g(f"s_lshl_b32 {sr(sT[3])}, {sr(sW)}, 11")
    g(f"v_add_u32 {vr(vT0)}, {sr(sT[3])}, {vr(vV)}")
    g(f"v_add_u32 {vr(vT1)}, 0x10000, {vr(vT0)}")
    def ldsfrag(n):
        for u in range(2):
            off = WL + 16384 * n + 1024 * u
            if off < 65536: g(f"ds_read_b128 {vr(vLT[u],4)}, {vr(vT0)} offset:{off}")
            else: g(f"ds_read_b128 {vr(vLT[u],4)}, {vr(vT1)} offset:{off-65536}")
    ldsfrag(0)
    g(f"s_cmp_lg_u32 {sr(sW)}, 0")
    g("s_cbranch_scc1 L_polled")
    g(f"s_mov_b32 {sr(sT[4])}, 0")
    g.label("L_poll")
    g(f"buffer_load_dword {vr(vP)}, off, {sr(sDBG,4)}, {sr(sT[2])} sc1")
    g("s_waitcnt vmcnt(0)")
    g(f"v_readfirstlane_b32 {sr(sT[5])}, {vr(vP)}")
    g(f"s_add_u32 {sr(sT[4])}, {sr(sT[4])}, 1")
    g(f"s_cmp_ge_u32 {sr(sT[5])}, 32")
    g("s_cbranch_scc1 L_polled")
    g(f"s_cmp_ge_u32 {sr(sT[4])}, 0x40000")
    g("s_cbranch_scc1 L_polled")
    g("s_sleep 2")
    g("s_branch L_poll")
    g.label("L_polled")
    g("s_barrier")
    if DBG:
        g("s_memrealtime s[76:77]"); g("s_waitcnt lgkmcnt(0)")
        g(f"s_cmp_eq_u32 {sr(sOB)}, 0")
        g(f"s_cselect_b32 {sr(sSt+8)}, s76, {sr(sSt+8)}")
        g(f"s_cselect_b32 {sr(sSt+9)}, {sr(sSt+9)}, s76")
    for i in range(8):
        g(f"buffer_load_dwordx4 {vr(vD+4*i,4)}, {vr(vV2 if i >= 4 else vV)}, {sr(sO,4)}, {sr(sT[1])} offen offset:{1024*(i%4)} sc1")
    acc = [[vY, vY + 4], [vVt, vVt + 4]]
    for i in range(8):
        g(f"s_waitcnt vmcnt({7-i})")
        for par in range(2):
            s = 2 * i + par
            first = (i == 0)
            if s in LDSK:
                n = LDSK.index(s)
                g("s_waitcnt lgkmcnt(0)")
                fr = vLT
            else:
                j = REGK.index(s)
                fr = [A0(j), A1(j)]
            for u in range(2):
                a = acc[par][u]
                c = "0" if first else vr(a, 4)
                g(f"v_mfma_f32_16x16x32_bf16 {vr(a,4)}, {vr(fr[u],4)}, {vr(vD+4*i,4)}, {c}")
            if s in LDSK and n + 1 < len(LDSK):
                ldsfrag(n + 1)
    TT = vD
    g(f"v_and_b32 {vr(vT0)}, 15, {vr(vLane)}")
    g(f"v_lshrrev_b32 {vr(vT1)}, 4, {vr(vLane)}")
    g(f"v_mul_u32_u24 {vr(vP)}, {RBS}, {vr(vT0)}")
    g(f"v_lshl_add_u32 {vr(vP)}, {vr(vT1)}, 5, {vr(vP)}")
    g(f"s_mul_i32 {sr(sT[3])}, {sr(sW)}, {RBW}")
    g(f"s_add_u32 {sr(sT[3])}, {sr(sT[3])}, {RB}")
    g(f"v_add_u32 {vr(vP)}, {sr(sT[3])}, {vr(vP)}")
    g(f"s_mul_i32 {sr(sT[3])}, {sr(sW)}, {RBS}")
    g(f"s_add_u32 {sr(sT[3])}, {sr(sT[3])}, {RB}")
    g(f"v_lshlrev_b32 {vr(vP+1)}, 3, {vr(vT0)}")
    g(f"v_add_u32 {vr(vP+1)}, {sr(sT[3])}, {vr(vP+1)}")
    g(f"v_lshlrev_b32 {vr(vP+2)}, 2, {vr(vT0)}")
    for r in range(4):
        for u in range(2):
            g(f"v_add_f32_dpp {vr(TT+2*r+u)}, {vr(acc[1][u]+r)}, {vr(acc[0][u]+r)} row_ror:8 row_mask:0xf bank_mask:0xf")
    g(f"s_mov_b64 exec, {sr(sMask,2)}")
    g(f"ds_write_b128 {vr(vP)}, {vr(TT,4)}")
    g(f"ds_write_b128 {vr(vP)}, {vr(TT+4,4)} offset:16")
    g("s_mov_b64 exec, -1")
    g(f"s_lshl_b32 {sr(sT[0])}, {sr(sT[0])}, 3")
    g(f"s_add_u32 {sr(sT[0])}, {sr(sT[0])}, {sr(sW)}")
    g(f"s_lshl_b32 {sr(sT[0])}, {sr(sT[0])}, 11")
    g(f"s_lshl_b32 {sr(sT[3])}, {sr(sCS)}, 6")
    g(f"s_add_u32 {sr(sT[0])}, {sr(sT[0])}, {sr(sT[3])}")
    g("s_waitcnt lgkmcnt(0)")
    g("s_barrier")
    for p in range(8):
        g(f"ds_read_b64 {vr(TT+8+2*p,2)}, {vr(vP+1)} offset:{RBW*p}")
    g("s_waitcnt lgkmcnt(0)")
    U = TT + 8
    for p in (4, 2, 1):
        for q in range(p):
            for u in range(2):
                g(f"v_add_f32 {vr(U+2*q+u)}, {vr(U+2*q+u)}, {vr(U+2*(q+p)+u)}")
    g(f"v_cvt_pk_bf16_f32 {vr(U)}, {vr(U)}, {vr(U+1)}")
    g("s_mov_b64 exec, 0xffff")
    g(f"buffer_store_dword {vr(U)}, {vr(vP+2)}, {sr(sOUT,4)}, {sr(sT[0])} offen")
    g("s_mov_b64 exec, -1")
    g(f"s_cmp_eq_u32 {sr(sOB)}, 1")
    g("s_cbranch_scc1 L_fin")
    g("s_barrier")
    stamp(g, 10)
    g("s_branch L_qk")
    g.label("L_fin")
    if DBG: g("s_waitcnt vmcnt(0)")
    stamp(g, 11)
    stamp_flush(g, 12)
    g.label("L_end")
    g("s_endpgm")

g = G()
g.raw(f"; @launch grid=(256,1,1) block=(512,1,1) lds={LDS}")
g.raw('.amdgcn_target "amdgcn-amd-amdhsa--gfx950"\n.text')
kernel(g)
g.raw('.section .rodata,"a"\n.p2align 6')
g.raw(".amdhsa_kernel standalone__mha_block_cached__sampling_kernel")
g.raw(f"  .amdhsa_next_free_vgpr 256\n  .amdhsa_next_free_sgpr 100\n  .amdhsa_accum_offset 256")
g.raw("  .amdhsa_group_segment_fixed_size 0\n  .amdhsa_kernarg_size 64\n  .amdhsa_user_sgpr_count 2")
g.raw("  .amdhsa_user_sgpr_kernarg_segment_ptr 1\n  .amdhsa_system_sgpr_workgroup_id_x 1")
g.raw("  .amdhsa_float_denorm_mode_32 3\n  .amdhsa_float_denorm_mode_16_64 3")
g.raw(".end_amdhsa_kernel")
open(sys.argv[1], "w").write(g.text())
```

```python
import sys, math, struct, os

def f32bits(x): return struct.unpack("<I", struct.pack("<f", x))[0]
OPT = dict(kv.split("=") for kv in sys.argv[2:])
WA = int(OPT.get("WA", 3))
WB = int(OPT.get("WB", 4))
WQ = int(OPT.get("WQ", 8))
DBG = int(OPT.get("dbg", 0))
OPB = int(OPT.get("opb", 10))
OPF = int(OPT.get("opf", 12))
QTAIL = int(OPT.get("qtail", 8))
PAR = OPT.get("par", "xcc")
NLDS = int(OPT.get("nlds", 11))
NOW = int(OPT.get("now", 0))
def pol(s): return "" if s == "-" else " " + s.replace("+", " ")
MST = pol(OPT.get("mst", "sc1"))
MLD = pol(OPT.get("mld", "sc1"))
CLR = pol(OPT.get("clr", "sc1"))
PRIO = int(OPT.get("prio", 0))
HMAP = OPT.get("hmap", "A")
QROT = int(OPT.get("qrot", 0))
WROT = int(OPT.get("wrot", 0))
assert WB >= WA

class G:
    def __init__(self): self.L = []; self.q = []; self.nl = 0
    def __call__(self, s): self.L.append("  " + s)
    def label(self, s): self.L.append(s + ":")
    def raw(self, s): self.L.append(s)
    def text(self): return "\n".join(self.L) + "\n"
    def newlabel(self):
        self.nl += 1; return f"L_t{self.nl}"
    def vm(self, s, tag):
        self(s); self.q.append(tag)
    def wait_idx(self, idx):
        n = len(self.q) - 1 - idx
        assert n >= 0
        self(f"s_waitcnt vmcnt({min(n,63)})")
        if n <= 63: self.q = self.q[idx + 1:]
    def wait_tag(self, tag):
        idx = [i for i, t in enumerate(self.q) if t == tag]
        if idx: self.wait_idx(idx[-1])
    def throttle(self, w, pred=lambda t: True):
        idx = [i for i, t in enumerate(self.q) if pred(t)]
        if len(idx) >= w: self.wait_idx(idx[-w])

def vr(a, n=1): return f"v{a}" if n == 1 else f"v[{a}:{a+n-1}]"
def sr(a, n=1): return f"s{a}" if n == 1 else f"s[{a}:{a+n-1}]"

sK, sV, sWQ, sX, sWO, sO, sOUT, sDBG = 20, 24, 28, 32, 36, 40, 44, 48
sW, sH, sBP, sCB, sCur, sNxt, sSelLo, sSelHi, sC = 52, 53, 54, 55, 56, 57, 58, 59, 60
sT = [61, 62, 63, 64, 65, 66, 67]
sLW, sMB = 68, 69
sMask = 70
sBI, sN, sBase, sRot, sWoB, sOB = 72, 73, 74, 75, 78, 79
sKQ = 3
sSt = 80
sPar = 100
sHS = 28
sGB = 29
vWo = 0
vK, vK2, vV, vV2 = 1, 2, 3, 4
vM_, vL, vAl, vT0, vT1, vMn, vLane = 5, 6, 7, 8, 9, 10, 11
vP = 12; vY = 16; vVt = 24; vQ = 32; vO = 40; vD = 72; vKB = 104; vVB = 136; vSP = 168
vK1 = 168; vV1 = 200
vX4 = 252
QP = 0
CB = 0; RB = 32768
LW = 65536; LWS = 11264
QF = LW + 8 * LWS; QFS = 272
ML = QF + 16 * QFS
LDS = ML + 512
assert LDS <= 163840
MBS = 12288
SCALE = (128 ** -0.5) * math.log2(math.e)

def stamp(g, i):
    if not DBG: return
    g("s_memrealtime s[76:77]")
    g("s_waitcnt lgkmcnt(0)")
    g(f"s_mov_b32 {sr(sSt+i)}, s76")
def stamp_sel(g, i, s):
    if not DBG: return
    g("s_memrealtime s[76:77]")
    g("s_waitcnt lgkmcnt(0)")
    g(f"s_cmp_eq_u32 {sr(s)}, 0")
    g(f"s_cselect_b32 {sr(sSt+i)}, s76, {sr(sSt+i)}")
    g(f"s_cselect_b32 {sr(sSt+i+1)}, {sr(sSt+i+1)}, s76")
def stamp_flush(g, n):
    if not DBG: return
    g("s_mov_b32 s96, s18"); g("s_mov_b32 s97, s19"); g("s_mov_b32 s98, 0x2000000"); g("s_mov_b32 s99, 0x00020000")
    g("s_lshl_b32 s76, s2, 3"); g(f"s_add_u32 s76, s76, {sr(sW)}"); g("s_lshl_b32 s76, s76, 6"); g("s_add_u32 s76, s76, 0x1000000")
    g("s_mov_b64 exec, 1")
    for i in range(n):
        g(f"v_mov_b32 v1, {sr(sSt+i)}")
        g(f"buffer_store_dword v1, off, s[96:99], s76 offset:{4*i}")
    g("s_mov_b64 exec, -1")

def srd(g, d, p, size):
    g(f"s_mov_b32 {sr(d)}, {sr(p)}")
    g(f"s_mov_b32 {sr(d+1)}, {sr(p+1)}")
    g(f"s_mov_b32 {sr(d+2)}, {size:#x}")
    g(f"s_mov_b32 {sr(d+3)}, 0x00020000")

def koffs(i):
    G_, j = i >> 1, i & 1
    return (vK2 if G_ >= 2 else vK), (G_ & 1) * 2048 + 128 * j
def voffs(i):
    return (vV2 if i >= 4 else vV), 1024 * (i % 4)
def kload(buf, i, so):
    a, o = koffs(i)
    return f"buffer_load_dwordx4 {vr(buf+4*i,4)}, {vr(a)}, {sr(sK,4)}, {sr(so)} offen offset:{o} nt"
def vload(buf, i, so):
    a, o = voffs(i)
    return f"buffer_load_dwordx4 {vr(buf+4*i,4)}, {vr(a)}, {sr(sV,4)}, {sr(so)} offen offset:{o} nt"

def advance(g):
    g(f"s_mov_b32 {sr(sCur)}, {sr(sNxt)}")
    g(f"s_add_u32 {sr(sN)}, {sr(sN)}, 1")
    g(f"s_add_u32 {sr(sRot)}, {sr(sRot)}, 0x10000")
    g(f"s_and_b32 {sr(sRot)}, {sr(sRot)}, 0x70000")
    g(f"s_cmp_eq_u32 {sr(sN)}, 7")
    g(f"s_cselect_b32 {sr(sT[0])}, 0x1000000, 0")
    g(f"s_add_u32 {sr(sBase)}, {sr(sBase)}, {sr(sT[0])}")
    g(f"s_add_u32 {sr(sNxt)}, {sr(sBase)}, {sr(sRot)}")

def perm4(g, dst, rows, e):
    sel = sSelHi if (e & 1) else sSelLo
    for t in range(4):
        g(f"v_perm_b32 {vr(dst+t)}, {vr(rows[2*t+1] + (e>>1))}, {vr(rows[2*t] + (e>>1))}, {sr(sel)}")

def perm_mfma(g, rows, accbase, bfrag, first, es=range(8)):
    es = list(es)
    perm4(g, vVt + 4 * (es[0] & 1), rows, es[0])
    for n, e in enumerate(es):
        if n + 1 < len(es): perm4(g, vVt + 4 * (es[n+1] & 1), rows, es[n + 1])
        else: g("s_nop 1")
        T = vVt + 4 * (e & 1)
        a = accbase + 4 * e
        c = "0" if first else vr(a, 4)
        g(f"v_mfma_f32_16x16x32_bf16 {vr(a,4)}, {vr(T,4)}, {vr(bfrag,4)}, {c}")

def xlane(g, x, t, op):
    g(f"v_mov_b32 {vr(t)}, {vr(x)}")
    g("s_nop 1")
    g(f"v_permlane16_swap_b32 {vr(t)}, {vr(x)}")
    g(f"{op} {vr(x)}, {vr(x)}, {vr(t)}")
    g(f"v_mov_b32 {vr(t)}, {vr(x)}")
    g("s_nop 1")
    g(f"v_permlane32_swap_b32 {vr(t)}, {vr(x)}")
    g(f"{op} {vr(x)}, {vr(x)}, {vr(t)}")

def qk(g, KB):
    def M(D, G_):
        for j in range(2):
            c = "0" if j == 0 else vr(D, 16)
            g(f"v_mfma_f32_32x32x16_bf16 {vr(D,16)}, {vr(KB + 4*(2*G_+j), 4)}, {vr(vQ + 4*j, 4)}, {c}")
    def red(D, G_):
        for i in range(4):
            g(f"v_add_f32_dpp {vr(D+4*i)}, {vr(D+4*i+1)}, {vr(D+4*i)} row_ror:8 row_mask:0x5 bank_mask:0xf")
            g(f"v_add_f32_dpp {vr(D+4*i)}, {vr(D+4*i+3)}, {vr(D+4*i+2)} row_ror:8 row_mask:0xa bank_mask:0xf")
        g("s_nop 1")
        g(f"v_permlane16_swap_b32 {vr(D)}, {vr(D+4)}")
        g(f"v_permlane16_swap_b32 {vr(D+8)}, {vr(D+12)}")
        g(f"v_add_f32 {vr(vY+2*G_)}, {vr(D)}, {vr(D+4)}")
        g(f"v_add_f32 {vr(vY+2*G_+1)}, {vr(D+8)}, {vr(D+12)}")
    D0, D1 = vD, vD + 16
    M(D0, 0); M(D1, 1)
    g("s_nop 9")
    red(D0, 0); M(D0, 2); red(D1, 1); M(D1, 3); red(D0, 2); red(D1, 3)

def sm1(g):
    Y = vY
    g(f"v_max3_f32 {vr(vT0)}, {vr(Y)}, {vr(Y+1)}, {vr(Y+2)}")
    g(f"v_max3_f32 {vr(vT1)}, {vr(Y+3)}, {vr(Y+4)}, {vr(Y+5)}")
    g(f"v_max3_f32 {vr(vT0)}, {vr(vT0)}, {vr(Y+6)}, {vr(Y+7)}")
    g(f"v_max_f32 {vr(vT0)}, {vr(vT0)}, {vr(vT1)}")
    xlane(g, vT0, vT1, "v_max_f32")
    g(f"v_mul_f32 {vr(vT0)}, {sr(sC)}, {vr(vT0)}")
    g(f"v_max_f32 {vr(vMn)}, {vr(vM_)}, {vr(vT0)}")
    g(f"v_sub_f32 {vr(vT1)}, {vr(vM_)}, {vr(vMn)}")
    g(f"v_exp_f32 {vr(vAl)}, {vr(vT1)}")
    g(f"v_mov_b32 {vr(vM_)}, {vr(vMn)}")
    for i in range(8):
        g(f"v_fma_f32 {vr(Y+i)}, {vr(Y+i)}, {sr(sC)}, -{vr(vMn)}")
    for i in range(8):
        g(f"v_exp_f32 {vr(Y+i)}, {vr(Y+i)}")
    g(f"v_mul_f32 {vr(vL)}, {vr(vL)}, {vr(vAl)}")
    for u in range(4):
        g(f"v_cvt_pk_bf16_f32 {vr(vP+u)}, {vr(Y+2*u)}, {vr(Y+2*u+1)}")
    g(f"v_add_f32 {vr(vT0)}, {vr(Y)}, {vr(Y+1)}")
    g(f"v_add_f32 {vr(vT1)}, {vr(Y+2)}, {vr(Y+3)}")
    g(f"v_add_f32 {vr(Y+4)}, {vr(Y+4)}, {vr(Y+5)}")
    g(f"v_add_f32 {vr(Y+6)}, {vr(Y+6)}, {vr(Y+7)}")
    g(f"v_add_f32 {vr(vT0)}, {vr(vT0)}, {vr(vT1)}")
    g(f"v_add_f32 {vr(Y+4)}, {vr(Y+4)}, {vr(Y+6)}")
    g(f"v_add_f32 {vr(vL)}, {vr(vL)}, {vr(vT0)}")
    g(f"v_add_f32 {vr(vL)}, {vr(vL)}, {vr(Y+4)}")
def sm2(g):
    for i in range(32):
        g(f"v_mul_f32 {vr(vO+i)}, {vr(vO+i)}, {vr(vAl)}")
def pv(g, VB, es=range(8)):
    perm_mfma(g, [VB + 4 * i for i in range(8)], vO, vP, False, es)

def load_qfrag(g):
    g(f"v_and_b32 {vr(vT0)}, 7, {vr(vLane)}")
    g(f"v_lshrrev_b32 {vr(vT1)}, 3, {vr(vLane)}")
    g(f"v_mul_u32_u24 {vr(vT0)}, {QFS}, {vr(vT0)}")
    g(f"v_lshl_add_u32 {vr(vT0)}, {vr(vT1)}, 4, {vr(vT0)}")
    g(f"s_mul_i32 {sr(sT[0])}, {sr(sBI)}, {8*QFS}")
    g(f"s_add_u32 {sr(sT[0])}, {sr(sT[0])}, {QF}")
    g(f"v_add_u32 {vr(vT0)}, {sr(sT[0])}, {vr(vT0)}")
    for j in range(2):
        g(f"ds_read_b128 {vr(vQ+4*j,4)}, {vr(vT0)} offset:{128*j}")
def reset_state(g):
    g(f"v_mov_b32 {vr(vM_)}, 0xff7fffff")
    g(f"v_mov_b32 {vr(vL)}, 0")
    for i in range(32):
        g(f"v_mov_b32 {vr(vO+i)}, 0")

def dwait(g, ca, cb):
    if ca == cb or PAR == "none":
        g(f"s_waitcnt vmcnt({ca})"); return
    l = g.newlabel()
    g(f"s_cbranch_vccnz {l}")
    g(f"s_waitcnt vmcnt({ca})")
    g.label(l)
    g(f"s_waitcnt vmcnt({cb})")

def swz_write(g, base_s, src, A):
    g(f"v_and_b32 {vr(vT0)}, 15, {vr(vLane)}")
    g(f"v_lshrrev_b32 {vr(vT1)}, 4, {vr(vLane)}")
    g(f"v_lshlrev_b32 {vr(vT1)}, 7, {vr(vT1)}")
    g(f"v_lshlrev_b32 {vr(A)}, 5, {vr(vT0)}")
    g(f"v_xor_b32 {vr(vT1)}, {vr(vT1)}, {vr(A)}")
    g(f"v_lshl_add_u32 {vr(A)}, {vr(vT0)}, 9, {vr(vT1)}")
    g(f"v_add_u32 {vr(A)}, {sr(base_s)}, {vr(A)}")
    for k in range(1, 4):
        g(f"v_xor_b32 {vr(A+k)}, {32*k}, {vr(A)}")

def kernel(g):
    NAME = "standalone__mha_block_cached__sampling_kernel"
    g.raw(f".globl {NAME}\n.p2align 8\n.type {NAME},@function")
    g.label(NAME)
    g("s_cmp_ge_u32 s2, 256")
    g("s_cbranch_scc1 L_end")
    g("s_load_dwordx16 s[4:19], s[0:1], 0")
    g(f"v_lshrrev_b32 {vr(vT0)}, 6, v0")
    g(f"v_and_b32 {vr(vLane)}, 63, v0")
    g(f"v_readfirstlane_b32 {sr(sW)}, {vr(vT0)}")
    if HMAP == "A":
        g(f"s_and_b32 {sr(sH)}, s2, 31")
    elif HMAP == "B":
        g(f"s_and_b32 {sr(sT[0])}, s2, 7")
        g(f"s_bfe_u32 {sr(sT[1])}, s2, 0x20003")
        g(f"s_lshl_b32 {sr(sH)}, {sr(sT[0])}, 2")
        g(f"s_or_b32 {sr(sH)}, {sr(sH)}, {sr(sT[1])}")
    else:
        g(f"s_and_b32 {sr(sH)}, s2, 1")
        g(f"s_bfe_u32 {sr(sT[1])}, s2, 0x20003")
        g(f"s_lshl_b32 {sr(sT[1])}, {sr(sT[1])}, 1")
        g(f"s_or_b32 {sr(sH)}, {sr(sH)}, {sr(sT[1])}")
        g(f"s_bfe_u32 {sr(sT[1])}, s2, 0x20001")
        g(f"s_lshl_b32 {sr(sT[1])}, {sr(sT[1])}, 3")
        g(f"s_or_b32 {sr(sH)}, {sr(sH)}, {sr(sT[1])}")
    g(f"s_and_b32 {sr(sCB)}, {sr(sH)}, 7")
    g(f"s_lshr_b32 {sr(sKQ)}, {sr(sH)}, 3")
    g(f"s_lshr_b32 {sr(sBP)}, s2, 5")
    g(f"s_mov_b32 {sr(sSelLo)}, 0x05040100")
    g(f"s_mov_b32 {sr(sSelHi)}, 0x07060302")
    m, gg = vT0, vT1
    g(f"v_and_b32 {vr(m)}, 15, {vr(vLane)}")
    g(f"v_lshrrev_b32 {vr(gg)}, 4, {vr(vLane)}")
    g(f"v_bfe_u32 {vr(vK)}, {vr(vLane)}, 4, 1")
    g(f"v_lshlrev_b32 {vr(vK)}, 10, {vr(vK)}")
    g(f"v_bfe_u32 {vr(vK2)}, {vr(vLane)}, 2, 1")
    g(f"v_lshl_add_u32 {vr(vK)}, {vr(vK2)}, 9, {vr(vK)}")
    g(f"v_bfe_u32 {vr(vK2)}, {vr(vLane)}, 3, 1")
    g(f"v_lshl_add_u32 {vr(vK)}, {vr(vK2)}, 8, {vr(vK)}")
    g(f"v_lshrrev_b32 {vr(vK2)}, 5, {vr(vLane)}")
    g(f"v_lshl_add_u32 {vr(vK)}, {vr(vK2)}, 6, {vr(vK)}")
    g(f"v_and_b32 {vr(vK2)}, 3, {vr(vLane)}")
    g(f"v_lshl_add_u32 {vr(vK)}, {vr(vK2)}, 4, {vr(vK)}")
    g(f"v_add_u32 {vr(vK2)}, 0x1000, {vr(vK)}")
    g(f"v_lshlrev_b32 {vr(vV)}, 4, {vr(vLane)}")
    g(f"v_add_u32 {vr(vV2)}, 0x1000, {vr(vV)}")
    vWq, vX = vM_, vL
    g(f"v_lshlrev_b32 {vr(vWq)}, 16, {vr(gg)}")
    g(f"v_lshl_add_u32 {vr(vWq)}, {vr(m)}, 4, {vr(vWq)}")
    g(f"v_lshlrev_b32 {vr(vX)}, 11, {vr(m)}")
    g(f"v_lshl_add_u32 {vr(vX)}, {vr(gg)}, 4, {vr(vX)}")
    g(f"v_lshlrev_b32 {vr(vWo)}, 12, {vr(gg)}")
    g(f"v_lshl_add_u32 {vr(vWo)}, {vr(m)}, 4, {vr(vWo)}")
    for i in range(4): g(f"v_mov_b32 {vr(vO+i)}, -1")
    sXo, sWqB, sO0 = sT[4], sT[5], sT[6]
    g(f"s_lshl_b32 {sr(sXo)}, {sr(sBP)}, 15")
    g(f"s_lshl_b32 {sr(sT[1])}, {sr(sW)}, 8")
    g(f"s_add_u32 {sr(sXo)}, {sr(sXo)}, {sr(sT[1])}")
    g(f"s_lshl_b32 {sr(sT[1])}, {sr(sW)}, 20")
    g(f"s_lshl_b32 {sr(sT[2])}, {sr(sH)}, 8")
    g(f"s_add_u32 {sr(sWqB)}, {sr(sT[1])}, {sr(sT[2])}")
    g(f"s_lshl_b32 {sr(sT[1])}, {sr(sKQ)}, 3")
    g(f"s_add_u32 {sr(sT[1])}, {sr(sT[1])}, {sr(sW)}")
    g(f"s_lshl_b32 {sr(sT[1])}, {sr(sT[1])}, 18")
    g(f"s_lshl_b32 {sr(sT[2])}, {sr(sCB)}, 8")
    g(f"s_add_u32 {sr(sWoB)}, {sr(sT[1])}, {sr(sT[2])}")
    g(f"s_mul_i32 {sr(sLW)}, {sr(sW)}, {LWS}")
    g(f"s_add_u32 {sr(sLW)}, {sr(sLW)}, {LW}")
    g(f"s_lshl_b32 {sr(sT[2])}, {sr(sBP)}, 5")
    g(f"s_add_u32 {sr(sT[2])}, {sr(sT[2])}, {sr(sH)}")
    g(f"s_mul_i32 {sr(sMB)}, {sr(sT[2])}, {MBS}")
    g(f"s_lshl_b32 {sr(sT[2])}, {sr(sBP)}, 6")
    g(f"s_add_u32 {sr(sT[2])}, {sr(sT[2])}, {sr(sH)}")
    g(f"s_lshl_b32 {sr(sBase)}, {sr(sT[2])}, 19")
    g(f"s_lshl_b32 {sr(sT[2])}, {sr(sW)}, 13")
    g(f"s_add_u32 {sr(sBase)}, {sr(sBase)}, {sr(sT[2])}")
    g(f"s_lshl_b32 {sr(sRot)}, {sr(sBP)}, 16")
    g(f"s_add_u32 {sr(sNxt)}, {sr(sBase)}, {sr(sRot)}")
    g(f"s_mov_b32 {sr(sN)}, -1")
    advance(g)
    g(f"s_mov_b32 {sr(sO0)}, {sr(sCur)}")
    advance(g)
    g(f"s_mov_b32 {sr(sC)}, {f32bits(SCALE):#x}")
    g(f"s_mov_b32 {sr(sMask)}, 0x00ff00ff")
    g(f"s_mov_b32 {sr(sMask+1)}, 0x00ff00ff")
    g(f"s_mov_b32 {sr(sBI)}, 0")
    if PAR == "xcc":
        g(f"s_getreg_b32 {sr(sPar)}, hwreg(HW_REG_XCC_ID, 0, 1)")
    elif PAR == "wg":
        g(f"s_and_b32 {sr(sPar)}, s2, 1")
    else:
        g(f"s_mov_b32 {sr(sPar)}, 0")
    g(f"s_mov_b32 {sr(sPar+1)}, 0")
    g(f"s_mov_b64 vcc, {sr(sPar,2)}")
    if PRIO:
        g(f"s_cmp_lt_u32 {sr(sW)}, 4")
        g("s_cbranch_scc1 L_noprio")
        g(f"s_setprio {PRIO}")
        g.label("L_noprio")
    g("s_waitcnt lgkmcnt(0)")
    stamp(g, 0)
    srd(g, sX, 4, 262144)
    srd(g, sWQ, 10, 8388608)
    srd(g, sK, 6, 0x10000000)
    srd(g, sV, 8, 0x10000000)
    srd(g, sO, 18, 256 * MBS)
    stgA = [vD + 4 * i for i in range(8)]
    stgB = [232 + 4 * i for i in range(6)] + [vY, vY + 4]
    stg = [stgA, stgB]
    sQS = sOB
    def xload(s):
        if QROT:
            g(f"s_add_u32 {sr(sT[3])}, {sr(sBP)}, {s}")
            g(f"s_and_b32 {sr(sT[3])}, {sr(sT[3])}, 3")
            g(f"s_lshl_b32 {sr(sT[3])}, {sr(sT[3])}, 6")
            g(f"s_add_u32 {sr(sT[3])}, {sr(sT[3])}, {sr(sXo)}")
            g.vm(f"buffer_load_dwordx4 {vr(vQ+4*(s&1),4)}, {vr(vX)}, {sr(sX,4)}, {sr(sT[3])} offen", f"x{s}")
        else:
            g.vm(f"buffer_load_dwordx4 {vr(vQ+4*(s&1),4)}, {vr(vX)}, {sr(sX,4)}, {sr(sXo)} offen offset:{64*s}", f"x{s}")
    def wqload(s, i):
        if QROT:
            if i == 0:
                g(f"s_add_u32 {sr(sQS)}, {sr(sBP)}, {s}")
                g(f"s_and_b32 {sr(sQS)}, {sr(sQS)}, 3")
                g(f"s_lshl_b32 {sr(sQS)}, {sr(sQS)}, 18")
                g(f"s_add_u32 {sr(sQS)}, {sr(sQS)}, {sr(sWqB)}")
            g(f"s_add_u32 {sr(sT[3])}, {sr(sQS)}, {i*8192:#x}")
        else:
            g(f"s_add_u32 {sr(sT[3])}, {sr(sWqB)}, {(32*s+i)*8192:#x}")
        g.vm(f"buffer_load_dwordx4 {vr(stg[s&1][i],4)}, {vr(vWq)}, {sr(sWQ,4)}, {sr(sT[3])} offen nt", f"wq{s}")
    kv = [(None, kload(vKB, i, sO0), "K0") for i in range(8)] + [(None, vload(vVB, i, sO0), "V0") for i in range(8)] + \
         [(None, kload(vK1, i, sCur), "K1") for i in range(8)] + [(None, vload(vV1, i, sCur), "V1") for i in range(8)]
    for i in range(8):
        a, o = koffs(i)
        kv.append((1024 * i - o, f"buffer_load_dwordx4 {vr(a)}, {sr(sK,4)}, {sr(sNxt)} offen offset:{o} nt lds", "K2L"))
    for i in range(NLDS - 8):
        a, o = voffs(i)
        kv.append((8192 + 1024 * i - o, f"buffer_load_dwordx4 {vr(a)}, {sr(sV,4)}, {sr(sNxt)} offen offset:{o} nt lds", "V2L"))
    NKV = len(kv)
    def kvissue(k, thr=True):
        mo, s, tag = kv[k]
        if mo is not None:
            if mo >= 0: g(f"s_add_u32 m0, {sr(sLW)}, {mo}")
            else: g(f"s_sub_u32 m0, {sr(sLW)}, {-mo}")
        if thr: g.throttle(WQ)
        if mo is not None: g("s_nop 0")
        g.vm(s, tag)
    def qcomp(s):
        g.wait_tag(f"wq{s}"); g.wait_tag(f"x{s}")
        perm_mfma(g, stg[s & 1], vO, vQ + 4 * (s & 1), s == 0)
    xload(0); xload(1)
    kvi = 0
    NKV_IN = NKV - QTAIL
    for idx in range(32):
        s, i = idx // 8, idx % 8
        if i == 0 and s >= 2:
            qcomp(s - 2)
            xload(s)
        g.throttle(WQ)
        wqload(s, i)
        while kvi < (idx + 1) * NKV_IN // 32:
            kvissue(kvi); kvi += 1
        if idx == 3:
            g(f"s_lshl_b32 {sr(sT[1])}, {sr(sW)}, 10")
            g(f"s_add_u32 {sr(sT[1])}, {sr(sT[1])}, {sr(sMB)}")
            g.vm(f"buffer_store_dwordx4 {vr(vO,4)}, {vr(vV)}, {sr(sO,4)}, {sr(sT[1])} offen{CLR}", "clr")
            g(f"s_lshl_b32 {sr(sT[1])}, {sr(sW)}, 9")
            g(f"s_add_u32 {sr(sT[1])}, {sr(sT[1])}, {sr(sMB)}")
            g(f"s_add_u32 {sr(sT[1])}, {sr(sT[1])}, 8192")
            g("s_mov_b32 exec_hi, 0")
            g.vm(f"buffer_store_dwordx4 {vr(vO,4)}, {vr(vV)}, {sr(sO,4)}, {sr(sT[1])} offen{CLR}", "clr")
            g("s_mov_b32 exec_hi, -1")
            srd(g, sWO, 12, 8388608)
            srd(g, sOUT, 14, 262144)
            srd(g, sDBG, 16, 256)
    qcomp(2)
    half = kvi + (NKV - kvi) // 2
    while kvi < half:
        kvissue(kvi); kvi += 1
    qcomp(3)
    while kvi < NKV:
        kvissue(kvi, False); kvi += 1
    stamp(g, 1)
    if PRIO: g("s_setprio 0")
    vA = vY
    g(f"s_lshl_b32 {sr(sT[0])}, {sr(sW)}, 13")
    g(f"v_add_u32 {vr(vA)}, {sr(sT[0])}, {vr(vV)}")
    g("s_nop 7")
    for e in range(8):
        g(f"ds_write_b128 {vr(vA)}, {vr(vO+4*e,4)} offset:{QP + 1024*e}")
    g(f"s_lshl_b32 {sr(sT[0])}, {sr(sW)}, 10")
    g(f"v_add_u32 {vr(vA)}, {sr(sT[0])}, {vr(vV)}")
    g("s_waitcnt lgkmcnt(0)")
    g("s_barrier")
    for p in range(8):
        g(f"ds_read_b128 {vr(vO+4*p,4)}, {vr(vA)} offset:{QP + 8192*p}")
    g(f"v_and_b32 {vr(vT0)}, 15, {vr(vLane)}")
    g(f"v_lshrrev_b32 {vr(vT1)}, 4, {vr(vLane)}")
    g(f"v_mul_u32_u24 {vr(vA+1)}, {QFS}, {vr(vT0)}")
    g(f"v_lshl_add_u32 {vr(vA+1)}, {vr(vT1)}, 6, {vr(vA+1)}")
    g(f"s_lshl_b32 {sr(sT[0])}, {sr(sW)}, 1")
    g(f"s_add_u32 {sr(sT[0])}, {sr(sT[0])}, {QF}")
    g(f"v_add_u32 {vr(vA+1)}, {sr(sT[0])}, {vr(vA+1)}")
    g("s_waitcnt lgkmcnt(0)")
    for p in (4, 2, 1):
        for q in range(p):
            for r in range(4):
                g(f"v_add_f32 {vr(vO+4*q+r)}, {vr(vO+4*q+r)}, {vr(vO+4*(q+p)+r)}")
    g(f"v_cvt_pk_bf16_f32 {vr(vO+4)}, {vr(vO)}, {vr(vO+1)}")
    g(f"v_cvt_pk_bf16_f32 {vr(vO+5)}, {vr(vO+2)}, {vr(vO+3)}")
    g(f"ds_write_b16 {vr(vA+1)}, {vr(vO+4)} offset:0")
    g(f"ds_write_b16_d16_hi {vr(vA+1)}, {vr(vO+4)} offset:16")
    g(f"ds_write_b16 {vr(vA+1)}, {vr(vO+5)} offset:32")
    g(f"ds_write_b16_d16_hi {vr(vA+1)}, {vr(vO+5)} offset:48")
    g("s_waitcnt lgkmcnt(0)")
    g("s_barrier")
    load_qfrag(g)
    reset_state(g)
    advance(g)
    g(f"s_mul_i32 {sr(sGB)}, {sr(sBP)}, {32*MBS}")
    g(f"v_add_u32 {vr(vX4)}, {sr(sLW)}, {vr(vV)}")
    g("s_waitcnt lgkmcnt(0)")
    stamp(g, 2)
    g.wait_tag("K0"); qk(g, vKB)
    for i in range(3): g.vm(kload(vKB, i, sNxt), "K3")
    g(f"s_cmp_lg_u32 {sr(sW)}, 7")
    g("s_cbranch_scc1 L_nosig")
    g(f"s_lshl_b32 {sr(sT[2])}, {sr(sBP)}, 5")
    g(f"v_mov_b32 {vr(vT0)}, 1")
    g("s_mov_b64 exec, 1")
    g(f"buffer_atomic_add {vr(vT0)}, off, {sr(sDBG,4)}, {sr(sT[2])} sc1")
    g("s_mov_b64 exec, -1")
    g.label("L_nosig")
    sm1(g); sm2(g)
    g.wait_tag("V0"); pv(g, vVB)
    NV = NLDS - 8
    for i in range(NV, 8): g.vm(vload(vVB, i, sCur), "V2")
    g.wait_tag("K1"); qk(g, vK1)
    g.wait_tag("V2L"); g.wait_tag("K2L")
    for i in range(8):
        g(f"ds_read_b128 {vr(vK1+4*i,4)}, {vr(vX4)} offset:{1024*i}")
    for i in range(NV):
        g(f"ds_read_b128 {vr(vVB+4*i,4)}, {vr(vX4)} offset:{8192+1024*i}")
    for i in range(3, 6): g.vm(kload(vKB, i, sNxt), "K3")
    sm1(g); sm2(g)
    pv(g, vV1)
    for i in range(6, 8): g.vm(kload(vKB, i, sNxt), "K3")
    g("s_waitcnt lgkmcnt(0)")
    qk(g, vK1)
    sm1(g); sm2(g)
    g.wait_tag("V2"); pv(g, vVB)
    stamp(g, 3)
    def cnt(full, pos, Wn):
        c = 0; k = 0; p = pos - 1
        while True:
            if full[p] == "K":
                k += 1
                if k == Wn: return c
            c += 1; p -= 1
    g.label("L_xtop")
    advance(g)
    sWS = sOB
    if WROT: g(f"s_add_u32 {sr(sWS)}, {sr(sN)}, {sr(sBP)}")
    else: g(f"s_mov_b32 {sr(sWS)}, {sr(sN)}")
    g(f"s_add_u32 {sr(sWS)}, {sr(sWS)}, 1")
    g(f"s_and_b32 {sr(sWS)}, {sr(sWS)}, 3")
    g(f"s_lshl_b32 {sr(sWS)}, {sr(sWS)}, 16")
    g(f"s_add_u32 {sr(sWS)}, {sr(sWS)}, {sr(sWoB)}")
    seq = ["K"] * 8
    for i in range(8):
        dwait(g, cnt(seq, len(seq), WA), cnt(seq, len(seq), WB))
        g(vload(vVB, i, sCur)); seq.append("K")
        if not NOW:
            g(f"s_add_u32 m0, {sr(sLW)}, {1024*i}")
            g(f"s_add_u32 {sr(sT[3])}, {sr(sWS)}, {(8*(i&3) + (i>>2))*2048:#x}")
            g(f"buffer_load_dwordx4 {vr(vWo)}, {sr(sWO,4)}, {sr(sT[3])} offen nt lds"); seq.append("X")
        if i == WB - 1: qk(g, vKB)
        if i == WB: sm1(g)
        if i == WB + 1: sm2(g)
    for i in range(8):
        dwait(g, cnt(seq, len(seq), WA), cnt(seq, len(seq), WB))
        g(kload(vKB, i, sNxt)); seq.append("K")
        if i == WB - 1: pv(g, vVB)
    for i in range(8):
        g(f"ds_read_b128 {vr(vD+4*i,4)}, {vr(vX4)} offset:{1024*i}")
    rows = [vD + 4 * i for i in range(8)]
    g(f"s_cmp_eq_u32 {sr(sN)}, 4")
    g("s_cbranch_scc1 L_s1")
    g(f"s_cmp_eq_u32 {sr(sN)}, 5")
    g("s_cbranch_scc1 L_s2")
    g(f"s_cmp_eq_u32 {sr(sN)}, 6")
    g("s_cbranch_scc1 L_s3")
    g("s_waitcnt lgkmcnt(0)")
    for e in range(8): perm4(g, vSP + 4 * e, rows, e)
    g("s_branch L_xtop")
    g.label("L_s1")
    g("s_waitcnt lgkmcnt(0)")
    for e in range(8): perm4(g, vSP + 32 + 4 * e, rows, e)
    g("s_branch L_xtop")
    g.label("L_s2")
    g("s_waitcnt lgkmcnt(0)")
    for e in range(5): perm4(g, vSP + 64 + 4 * e, rows, e)
    for e in range(5, 8): perm4(g, vY + 4 * (e - 5), rows, e)
    for e in range(5, 8): g(f"ds_write_b128 {vr(vX4)}, {vr(vY+4*(e-5),4)} offset:{8192+1024*(e-5)}")
    g("s_waitcnt lgkmcnt(0)")
    g("s_branch L_xtop")
    g.label("L_s3")
    g("s_waitcnt lgkmcnt(0)")
    for hf in range(2):
        for e in range(4): perm4(g, vY + 4 * e, rows, 4 * hf + e)
        for e in range(4): g(f"ds_write_b128 {vr(vX4)}, {vr(vY+4*e,4)} offset:{1024*(4*hf+e)}")
        g("s_waitcnt lgkmcnt(0)")
    stamp(g, 12)
    g.label("L_top")
    advance(g)
    for i in range(8):
        dwait(g, WA - 1, WB - 1)
        g(vload(vVB, i, sCur))
        if i == WB - 1:
            g.label("L_qk")
            qk(g, vKB)
        if i == WB: sm1(g)
        if i == WB + 1: sm2(g)
    g(f"s_cmp_eq_u32 {sr(sN)}, 15")
    g("s_cbranch_scc1 L_last")
    for i in range(WB):
        dwait(g, WA - 1, WB - 1)
        g(kload(vKB, i, sNxt))
    g.label("L_pv")
    pv(g, vVB)
    g(f"s_and_b32 {sr(sT[0])}, {sr(sN)}, 7")
    g(f"s_cmp_eq_u32 {sr(sT[0])}, 7")
    g("s_cbranch_scc1 L_hookC")
    g(f"s_cmp_eq_u32 {sr(sN)}, {OPB}")
    g("s_cbranch_scc1 L_hookO")
    g(f"s_cmp_eq_u32 {sr(sN)}, {OPF}")
    g("s_cbranch_scc1 L_hookF")
    g.label("L_krest")
    for i in range(WB, 8):
        dwait(g, WA - 1, WB - 1)
        g(kload(vKB, i, sNxt))
    g("s_branch L_top")
    g.label("L_last")
    g("s_waitcnt vmcnt(0)")
    g("s_branch L_pv")
    def preissue():
        for i in range(WB, 8): g(kload(vKB, i, sNxt))
        advance(g)
        for i in range(WB): g(vload(vVB, i, sCur))
    def back_to_qk():
        g(f"s_mov_b64 vcc, {sr(sPar,2)}")
        g(f"s_waitcnt vmcnt({WB})")
        g("s_branch L_qk")
    g.label("L_hookC")
    stamp_sel(g, 4, sBI)
    g(f"s_cmp_eq_u32 {sr(sBI)}, 1")
    g("s_cbranch_scc1 L_hookC2")
    preissue()
    g.label("L_hookC2")
    xlane(g, vL, vT1, "v_add_f32")
    vA = vY
    g(f"s_lshl_b32 {sr(sT[0])}, {sr(sW)}, 12")
    if CB: g(f"s_add_u32 {sr(sT[0])}, {sr(sT[0])}, {CB}")
    swz_write(g, sT[0], vO, vA)
    g(f"s_lshl_b32 {sr(sT[0])}, {sr(sW)}, 2")
    g(f"s_add_u32 {sr(sT[0])}, {sr(sT[0])}, {ML}")
    g(f"v_lshlrev_b32 {vr(vA+4)}, 6, {vr(vT0)}")
    g(f"v_add_u32 {vr(vA+4)}, {sr(sT[0])}, {vr(vA+4)}")
    g(f"s_mov_b64 exec, {sr(sMask,2)}")
    for e in range(8):
        g(f"ds_write_b128 {vr(vA+(e>>1))}, {vr(vO+4*e,4)} offset:{16*(e&1)}")
    g("s_mov_b64 exec, 0xff")
    g(f"ds_write_b32 {vr(vA+4)}, {vr(vM_)}")
    g(f"ds_write_b32 {vr(vA+4)}, {vr(vL)} offset:32")
    g("s_mov_b64 exec, -1")
    g(f"v_bfe_u32 {vr(vT0)}, {vr(vLane)}, 2, 3")
    g(f"v_lshlrev_b32 {vr(vA+5)}, 6, {vr(vT0)}")
    g(f"v_add_u32 {vr(vA+5)}, {ML}, {vr(vA+5)}")
    g(f"v_lshrrev_b32 {vr(vT1)}, 5, {vr(vLane)}")
    g(f"v_xor_b32 {vr(vT1)}, {vr(vT1)}, {vr(vT0)}")
    g(f"v_lshlrev_b32 {vr(vT1)}, 5, {vr(vT1)}")
    g(f"s_lshl_b32 {sr(sT[0])}, {sr(sW)}, 6")
    g(f"v_xor_b32 {vr(vT1)}, {sr(sT[0])}, {vr(vT1)}")
    g(f"v_lshl_add_u32 {vr(vA+6)}, {vr(vT0)}, 9, {vr(vT1)}")
    g(f"v_and_b32 {vr(vT0)}, 3, {vr(vLane)}")
    g(f"v_lshl_add_u32 {vr(vA+6)}, {vr(vT0)}, 3, {vr(vA+6)}")
    g("s_waitcnt lgkmcnt(0)")
    g("s_barrier")
    mm = vD
    for i in range(4):
        g(f"ds_read_b128 {vr(mm+4*i,4)}, {vr(vA+5)} offset:{16*i}")
    for p in range(8):
        g(f"ds_read_b64 {vr(vO+2*p,2)}, {vr(vA+6)} offset:{CB + 4096*p}")
    g(f"s_lshl_b32 {sr(sT[0])}, {sr(sBI)}, 11")
    g(f"s_add_u32 {sr(sT[0])}, {sr(sT[0])}, {sr(sMB)}")
    g(f"s_lshl_b32 {sr(sT[1])}, {sr(sW)}, 8")
    g(f"s_add_u32 {sr(sT[0])}, {sr(sT[0])}, {sr(sT[1])}")
    g(f"s_add_u32 {sr(sT[0])}, {sr(sT[0])}, 8192")
    g(f"v_lshlrev_b32 {vr(vA+2)}, 2, {vr(vLane)}")
    g("s_waitcnt lgkmcnt(8)")
    g(f"v_max3_f32 {vr(vT0)}, {vr(mm)}, {vr(mm+1)}, {vr(mm+2)}")
    g(f"v_max3_f32 {vr(vT1)}, {vr(mm+3)}, {vr(mm+4)}, {vr(mm+5)}")
    g(f"v_max3_f32 {vr(vT0)}, {vr(vT0)}, {vr(mm+6)}, {vr(mm+7)}")
    g(f"v_max_f32 {vr(vT0)}, {vr(vT0)}, {vr(vT1)}")
    for p in range(8):
        g(f"v_sub_f32 {vr(mm+p)}, {vr(mm+p)}, {vr(vT0)}")
    for p in range(8):
        g(f"v_exp_f32 {vr(mm+p)}, {vr(mm+p)}")
    g("s_nop 0")
    g(f"v_mul_f32 {vr(vT1)}, {vr(mm)}, {vr(mm+8)}")
    for p in range(1, 8):
        g(f"v_fmac_f32 {vr(vT1)}, {vr(mm+p)}, {vr(mm+8+p)}")
    g(f"v_rcp_f32 {vr(vT1)}, {vr(vT1)}")
    g("s_waitcnt lgkmcnt(0)")
    R0, R1 = vP, vP + 1
    g(f"v_mul_f32 {vr(R0)}, {vr(mm)}, {vr(vO)}")
    g(f"v_mul_f32 {vr(R1)}, {vr(mm)}, {vr(vO+1)}")
    for p in range(1, 8):
        g(f"v_fmac_f32 {vr(R0)}, {vr(mm+p)}, {vr(vO+2*p)}")
        g(f"v_fmac_f32 {vr(R1)}, {vr(mm+p)}, {vr(vO+2*p+1)}")
    g(f"v_mul_f32 {vr(R0)}, {vr(R0)}, {vr(vT1)}")
    g(f"v_mul_f32 {vr(R1)}, {vr(R1)}, {vr(vT1)}")
    g(f"v_cvt_pk_bf16_f32 {vr(R0)}, {vr(R0)}, {vr(R1)}")
    g(f"v_min_u32 {vr(R0)}, -2, {vr(R0)}")
    g(f"s_mov_b32 {sr(sT[3])}, 0x11111111")
    g(f"s_mov_b32 {sr(sT[4])}, 0x11111111")
    for k in range(1, 4):
        g(f"v_mov_b32_dpp {vr(vP+k)}, {vr(R0)} quad_perm:[{k},{k},{k},{k}] row_mask:0xf bank_mask:0xf")
    g(f"s_mov_b64 exec, {sr(sT[3],2)}")
    g(f"buffer_store_dwordx4 {vr(vP,4)}, {vr(vA+2)}, {sr(sO,4)}, {sr(sT[0])} offen{MST}")
    g("s_mov_b64 exec, -1")
    stamp_sel(g, 6, sBI)
    g(f"s_cmp_eq_u32 {sr(sBI)}, 1")
    g(f"s_mov_b32 {sr(sOB)}, 1")
    g("s_cbranch_scc1 L_hookO2")
    g(f"s_mov_b32 {sr(sBI)}, 1")
    load_qfrag(g)
    reset_state(g)
    g("s_waitcnt lgkmcnt(0)")
    g(f"s_lshl_b32 {sr(sT[2])}, {sr(sBP)}, 5")
    g(f"s_load_dword {sr(sHS)}, s[16:17], {sr(sT[2])}")
    g(f"s_mov_b64 vcc, {sr(sPar,2)}")
    g(f"s_waitcnt vmcnt({WB+1})")
    g("s_branch L_qk")
    g.label("L_hookO")
    preissue()
    g(f"s_mov_b32 {sr(sOB)}, 0")
    g("s_waitcnt lgkmcnt(0)")
    g(f"s_cmp_ge_u32 {sr(sHS)}, 32")
    g("s_cbranch_scc1 L_hookO2")
    g(f"s_lshl_b32 {sr(sT[2])}, {sr(sBP)}, 5")
    g(f"s_mov_b32 {sr(sT[4])}, 0")
    g.label("L_hspoll")
    g(f"buffer_load_dword {vr(vT0)}, off, {sr(sDBG,4)}, {sr(sT[2])} sc1")
    g("s_waitcnt vmcnt(0)")
    g(f"v_readfirstlane_b32 {sr(sT[5])}, {vr(vT0)}")
    g(f"s_add_u32 {sr(sT[4])}, {sr(sT[4])}, 1")
    g(f"s_cmp_ge_u32 {sr(sT[5])}, 32")
    g("s_cbranch_scc1 L_hookO2")
    g(f"s_cmp_ge_u32 {sr(sT[4])}, 0x20000")
    g("s_cbranch_scc1 L_hookO2")
    g("s_sleep 8")
    g("s_branch L_hspoll")
    g.label("L_hookO2")
    g(f"s_lshl_b32 {sr(sT[1])}, {sr(sKQ)}, 3")
    g(f"s_add_u32 {sr(sT[1])}, {sr(sT[1])}, {sr(sW)}")
    g(f"s_mul_i32 {sr(sT[1])}, {sr(sT[1])}, {MBS}")
    g(f"s_add_u32 {sr(sT[1])}, {sr(sT[1])}, {sr(sGB)}")
    g(f"s_lshl_b32 {sr(sT[2])}, {sr(sOB)}, 11")
    g(f"s_add_u32 {sr(sT[1])}, {sr(sT[1])}, {sr(sT[2])}")
    g(f"s_add_u32 {sr(sT[1])}, {sr(sT[1])}, 8192")
    g(f"v_and_b32 {vr(vT0)}, 7, {vr(vLane)}")
    g(f"v_lshrrev_b32 {vr(vT1)}, 4, {vr(vLane)}")
    g(f"v_lshlrev_b32 {vr(vT1)}, 7, {vr(vT1)}")
    g(f"v_lshl_add_u32 {vr(vAl)}, {vr(vT0)}, 4, {vr(vT1)}")
    Bf = [vY, vY + 4, vVt, vVt + 4]
    LT = [vP, vQ, vQ + 4, vX4]
    g(f"v_mov_b32 {vr(vMn)}, {vr(vX4)}")
    lf = [(2, e, 8192 + 1024 * (e - 5)) for e in range(5, 8)] + [(3, e, 1024 * e) for e in range(8)]
    def ldsread(k): g(f"ds_read_b128 {vr(LT[k % 4],4)}, {vr(vMn)} offset:{lf[k][2]}")
    for k in range(4): ldsread(k)
    g(f"s_mov_b32 {sr(sT[4])}, 0")
    bo = [sT[0], sT[2], sT[3], sT[5]]
    for s in range(4):
        if WROT:
            g(f"s_add_u32 {sr(bo[s])}, {sr(sBP)}, {s}")
            g(f"s_and_b32 {sr(bo[s])}, {sr(bo[s])}, 3")
            g(f"s_lshl_b32 {sr(bo[s])}, {sr(bo[s])}, 9")
            g(f"s_add_u32 {sr(bo[s])}, {sr(bo[s])}, {sr(sT[1])}")
        else:
            g(f"s_add_u32 {sr(bo[s])}, {sr(sT[1])}, {512*s}")
    g.label("L_poll")
    for s in range(4):
        g(f"buffer_load_dwordx4 {vr(Bf[s],4)}, {vr(vAl)}, {sr(sO,4)}, {sr(bo[s])} offen{MLD}")
    g("s_waitcnt vmcnt(0)")
    g(f"v_max3_u32 {vr(vT0)}, {vr(vY)}, {vr(vY+1)}, {vr(vY+2)}")
    g(f"v_max3_u32 {vr(vT1)}, {vr(vY+3)}, {vr(vY+4)}, {vr(vY+5)}")
    for k in range(6, 16, 4):
        g(f"v_max3_u32 {vr(vT0)}, {vr(vT0)}, {vr(vY+k)}, {vr(vY+k+1)}")
        if k + 3 < 16: g(f"v_max3_u32 {vr(vT1)}, {vr(vT1)}, {vr(vY+k+2)}, {vr(vY+k+3)}")
    g(f"v_max_u32 {vr(vT0)}, {vr(vT0)}, {vr(vT1)}")
    g(f"v_cmp_eq_u32 vcc, -1, {vr(vT0)}")
    g("s_cbranch_vccz L_polled")
    g(f"s_add_u32 {sr(sT[4])}, {sr(sT[4])}, 1")
    g(f"s_cmp_ge_u32 {sr(sT[4])}, 0x20000")
    g("s_cbranch_scc1 L_polled")
    g("s_sleep 1")
    g("s_branch L_poll")
    g.label("L_polled")
    stamp_sel(g, 8, sOB)
    rf = [(0, e, vSP + 4 * e) for e in range(8)] + [(1, e, vSP + 32 + 4 * e) for e in range(8)] + [(2, e, vSP + 64 + 4 * e) for e in range(5)]
    def mf(s, e, a):
        acc = vD + 4 * e
        c = "0" if s == 0 else vr(acc, 4)
        g(f"v_mfma_f32_16x16x32_bf16 {vr(acc,4)}, {vr(a,4)}, {vr(Bf[s],4)}, {c}")
    for k in range(8): mf(*rf[k])
    ri = 8
    nissued = 4
    for k in range(len(lf)):
        outstanding = nissued - k - 1
        g(f"s_waitcnt lgkmcnt({outstanding})")
        mf(lf[k][0], lf[k][1], LT[k % 4])
        if ri < len(rf): mf(*rf[ri]); ri += 1
        else: g("s_nop 1")
        if nissued < len(lf):
            ldsread(nissued); nissued += 1
    while ri < len(rf): mf(*rf[ri]); ri += 1
    g(f"v_mov_b32 {vr(vX4)}, {vr(vMn)}")
    vA = vY
    g(f"s_lshl_b32 {sr(sT[0])}, {sr(sW)}, 12")
    g(f"s_add_u32 {sr(sT[0])}, {sr(sT[0])}, {RB}")
    swz_write(g, sT[0], vD, vA)
    g(f"v_lshrrev_b32 {vr(vT1)}, 4, {vr(vLane)}")
    g(f"s_and_b32 {sr(sT[0])}, {sr(sW)}, 1")
    g(f"s_lshl_b32 {sr(sT[0])}, {sr(sT[0])}, 2")
    g(f"v_add_u32 {vr(vT1)}, {sr(sT[0])}, {vr(vT1)}")
    g(f"v_and_b32 {vr(vA+4)}, 3, {vr(vLane)}")
    g(f"v_xor_b32 {vr(vA+4)}, {vr(vA+4)}, {vr(vT1)}")
    g(f"v_lshlrev_b32 {vr(vA+4)}, 5, {vr(vA+4)}")
    g(f"s_lshr_b32 {sr(sT[0])}, {sr(sW)}, 1")
    g(f"s_lshl_b32 {sr(sT[0])}, {sr(sT[0])}, 7")
    g(f"v_xor_b32 {vr(vA+4)}, {sr(sT[0])}, {vr(vA+4)}")
    g(f"v_lshl_add_u32 {vr(vA+4)}, {vr(vT1)}, 9, {vr(vA+4)}")
    g(f"v_and_b32 {vr(vT1)}, 12, {vr(vLane)}")
    g(f"v_add_u32 {vr(vA+4)}, {vr(vT1)}, {vr(vA+4)}")
    g(f"s_mov_b64 exec, {sr(sMask,2)}")
    for e in range(8):
        g(f"ds_write_b128 {vr(vA+(e>>1))}, {vr(vD+4*e,4)} offset:{16*(e&1)}")
    g("s_mov_b64 exec, -1")
    g(f"s_lshl_b32 {sr(sT[0])}, {sr(sOB)}, 12")
    g(f"s_add_u32 {sr(sT[0])}, {sr(sT[0])}, {sr(sMB)}")
    g(f"s_lshl_b32 {sr(sT[1])}, {sr(sW)}, 9")
    g(f"s_add_u32 {sr(sT[0])}, {sr(sT[0])}, {sr(sT[1])}")
    g(f"v_lshlrev_b32 {vr(vA+5)}, 3, {vr(vLane)}")
    g(f"s_mov_b32 {sr(sT[3])}, 0x55555555")
    g(f"s_mov_b32 {sr(sT[4])}, 0x55555555")
    g("s_waitcnt lgkmcnt(0)")
    g("s_barrier")
    U = vD
    for p in range(8):
        g(f"ds_read_b32 {vr(U+2*p)}, {vr(vA+4)} offset:{RB + 4096*p}")
        g(f"ds_read_b32 {vr(U+2*p+1)}, {vr(vA+4)} offset:{RB + 4096*p + 16}")
    g("s_waitcnt lgkmcnt(0)")
    for p in (4, 2, 1):
        for q in range(p):
            for u in range(2):
                g(f"v_add_f32 {vr(U+2*q+u)}, {vr(U+2*q+u)}, {vr(U+2*(q+p)+u)}")
    g(f"v_min_u32 {vr(U)}, -2, {vr(U)}")
    g(f"v_min_u32 {vr(U+1)}, -2, {vr(U+1)}")
    g("s_nop 1")
    g(f"v_mov_b32_dpp {vr(U+2)}, {vr(U)} quad_perm:[1,1,3,3] row_mask:0xf bank_mask:0xf")
    g(f"v_mov_b32_dpp {vr(U+3)}, {vr(U+1)} quad_perm:[1,1,3,3] row_mask:0xf bank_mask:0xf")
    g(f"s_mov_b64 exec, {sr(sT[3],2)}")
    g(f"buffer_store_dwordx4 {vr(U,4)}, {vr(vA+5)}, {sr(sO,4)}, {sr(sT[0])} offen{MST}")
    g("s_mov_b64 exec, -1")
    stamp_sel(g, 10, sOB)
    g(f"s_cmp_eq_u32 {sr(sOB)}, 1")
    g("s_cbranch_scc1 L_hookF2")
    load_qfrag(g)
    g("s_waitcnt lgkmcnt(0)")
    g(f"s_mov_b64 vcc, {sr(sPar,2)}")
    g("s_branch L_qk")
    g.label("L_hookF")
    g(f"s_cmp_lg_u32 {sr(sW)}, 0")
    g("s_cbranch_scc1 L_krest")
    preissue()
    g.label("L_hookF2")
    g(f"s_cmp_lg_u32 {sr(sW)}, 0")
    g("s_cbranch_scc1 L_fin")
    g(f"s_mul_i32 {sr(sT[1])}, {sr(sCB)}, {MBS}")
    g(f"s_add_u32 {sr(sT[1])}, {sr(sT[1])}, {sr(sGB)}")
    g(f"s_lshl_b32 {sr(sT[2])}, {sr(sOB)}, 12")
    g(f"s_add_u32 {sr(sT[1])}, {sr(sT[1])}, {sr(sT[2])}")
    g(f"s_lshl_b32 {sr(sT[2])}, {sr(sKQ)}, 10")
    g(f"s_add_u32 {sr(sT[1])}, {sr(sT[1])}, {sr(sT[2])}")
    g(f"s_add_u32 {sr(sT[2])}, {sr(sT[1])}, {8*MBS}")
    g(f"s_add_u32 {sr(sT[3])}, {sr(sT[1])}, {16*MBS}")
    g(f"s_add_u32 {sr(sT[5])}, {sr(sT[1])}, {24*MBS}")
    g(f"s_lshl_b32 {sr(sT[0])}, {sr(sBP)}, 1")
    g(f"s_add_u32 {sr(sT[0])}, {sr(sT[0])}, {sr(sOB)}")
    g(f"s_lshl_b32 {sr(sT[0])}, {sr(sT[0])}, 14")
    g(f"s_lshl_b32 {sr(sT[6])}, {sr(sCB)}, 8")
    g(f"s_add_u32 {sr(sT[0])}, {sr(sT[0])}, {sr(sT[6])}")
    g(f"s_lshl_b32 {sr(sT[6])}, {sr(sKQ)}, 6")
    g(f"s_add_u32 {sr(sT[0])}, {sr(sT[0])}, {sr(sT[6])}")
    g(f"v_lshrrev_b32 {vr(vAl)}, 3, {vr(vLane)}")
    g(f"v_and_b32 {vr(vT1)}, 7, {vr(vLane)}")
    g(f"v_lshlrev_b32 {vr(vAl)}, 11, {vr(vAl)}")
    g(f"v_lshl_add_u32 {vr(vAl)}, {vr(vT1)}, 3, {vr(vAl)}")
    g(f"s_mov_b32 {sr(sT[4])}, 0")
    g.label("L_fpoll")
    for ks, so in enumerate([sT[1], sT[2], sT[3], sT[5]]):
        g(f"buffer_load_dwordx4 {vr(vY+4*ks,4)}, {vr(vV)}, {sr(sO,4)}, {sr(so)} offen{MLD}")
    g("s_waitcnt vmcnt(0)")
    g(f"v_max3_u32 {vr(vT0)}, {vr(vY)}, {vr(vY+1)}, {vr(vY+2)}")
    g(f"v_max3_u32 {vr(vT1)}, {vr(vY+3)}, {vr(vY+4)}, {vr(vY+5)}")
    for k in range(6, 16, 4):
        g(f"v_max3_u32 {vr(vT0)}, {vr(vT0)}, {vr(vY+k)}, {vr(vY+k+1)}")
        if k + 3 < 16: g(f"v_max3_u32 {vr(vT1)}, {vr(vT1)}, {vr(vY+k+2)}, {vr(vY+k+3)}")
    g(f"v_max_u32 {vr(vT0)}, {vr(vT0)}, {vr(vT1)}")
    g(f"v_cmp_eq_u32 vcc, -1, {vr(vT0)}")
    g("s_cbranch_vccz L_fpolled")
    g(f"s_add_u32 {sr(sT[4])}, {sr(sT[4])}, 1")
    g(f"s_cmp_ge_u32 {sr(sT[4])}, 0x20000")
    g("s_cbranch_scc1 L_fpolled")
    g("s_sleep 1")
    g("s_branch L_fpoll")
    g.label("L_fpolled")
    for c in range(4):
        g(f"v_add_f32 {vr(vY+c)}, {vr(vY+c)}, {vr(vY+4+c)}")
        g(f"v_add_f32 {vr(vY+8+c)}, {vr(vY+8+c)}, {vr(vY+12+c)}")
    for c in range(4):
        g(f"v_add_f32 {vr(vY+c)}, {vr(vY+c)}, {vr(vY+8+c)}")
    g(f"v_cvt_pk_bf16_f32 {vr(vY)}, {vr(vY)}, {vr(vY+1)}")
    g(f"v_cvt_pk_bf16_f32 {vr(vY+1)}, {vr(vY+2)}, {vr(vY+3)}")
    g(f"buffer_store_dwordx2 {vr(vY,2)}, {vr(vAl)}, {sr(sOUT,4)}, {sr(sT[0])} offen")
    g(f"s_cmp_eq_u32 {sr(sOB)}, 1")
    g("s_cbranch_scc1 L_fin")
    stamp(g, 13)
    g(f"s_mov_b64 vcc, {sr(sPar,2)}")
    g("s_nop 1")
    g("s_branch L_qk")
    g.label("L_fin")
    if DBG: g("s_waitcnt vmcnt(0)")
    stamp(g, 14)
    stamp_flush(g, 16)
    g.label("L_end")
    g("s_endpgm")

g = G()
g.raw(f"; @launch grid=(256,1,1) block=(512,1,1) lds={LDS}")
g.raw('.amdgcn_target "amdgcn-amd-amdhsa--gfx950"\n.text')
kernel(g)
g.raw('.section .rodata,"a"\n.p2align 6')
g.raw(".amdhsa_kernel standalone__mha_block_cached__sampling_kernel")
g.raw(f"  .amdhsa_next_free_vgpr 256\n  .amdhsa_next_free_sgpr 102\n  .amdhsa_accum_offset 256")
g.raw("  .amdhsa_group_segment_fixed_size 0\n  .amdhsa_kernarg_size 64\n  .amdhsa_user_sgpr_count 2")
g.raw("  .amdhsa_user_sgpr_kernarg_segment_ptr 1\n  .amdhsa_system_sgpr_workgroup_id_x 1")
g.raw("  .amdhsa_float_denorm_mode_32 3\n  .amdhsa_float_denorm_mode_16_64 3")
g.raw(".end_amdhsa_kernel")
open(sys.argv[1], "w").write(g.text())
```

```python
import sys, math, struct, os

def f32bits(x): return struct.unpack("<I", struct.pack("<f", x))[0]
OPT = dict(kv.split("=") for kv in sys.argv[2:])
WA = int(OPT.get("WA", 3))
WB = int(OPT.get("WB", 4))
WQ = int(OPT.get("WQ", 8))
DBG = int(OPT.get("dbg", 0))
OPB = int(OPT.get("opb", 10))
OPF = int(OPT.get("opf", 12))
QTAIL = int(OPT.get("qtail", 8))
PAR = OPT.get("par", "xcc")
NLDS = int(OPT.get("nlds", 11))
NOW = int(OPT.get("now", 0))
def pol(s): return "" if s == "-" else " " + s.replace("+", " ")
MST = pol(OPT.get("mst", "sc1"))
MLD = pol(OPT.get("mld", "sc1"))
CLR = pol(OPT.get("clr", "sc1"))
PRIO = int(OPT.get("prio", 0))
DBG2 = int(OPT.get("dbg2", 0))
HMAP = OPT.get("hmap", "A")
QROT = int(OPT.get("qrot", 0))
WROT = int(OPT.get("wrot", 0))
assert WB >= WA

class G:
    def __init__(self): self.L = []; self.q = []; self.nl = 0
    def __call__(self, s): self.L.append("  " + s)
    def label(self, s): self.L.append(s + ":")
    def raw(self, s): self.L.append(s)
    def text(self): return "\n".join(self.L) + "\n"
    def newlabel(self):
        self.nl += 1; return f"L_t{self.nl}"
    def vm(self, s, tag):
        self(s); self.q.append(tag)
    def wait_idx(self, idx):
        n = len(self.q) - 1 - idx
        assert n >= 0
        self(f"s_waitcnt vmcnt({min(n,63)})")
        if n <= 63: self.q = self.q[idx + 1:]
    def wait_tag(self, tag):
        idx = [i for i, t in enumerate(self.q) if t == tag]
        if idx: self.wait_idx(idx[-1])
    def throttle(self, w, pred=lambda t: True):
        idx = [i for i, t in enumerate(self.q) if pred(t)]
        if len(idx) >= w: self.wait_idx(idx[-w])

def vr(a, n=1): return f"v{a}" if n == 1 else f"v[{a}:{a+n-1}]"
def sr(a, n=1): return f"s{a}" if n == 1 else f"s[{a}:{a+n-1}]"

sK, sV, sWQ, sX, sWO, sO, sOUT, sDBG = 20, 24, 28, 32, 36, 40, 44, 48
sW, sH, sBP, sCB, sCur, sNxt, sSelLo, sSelHi, sC = 52, 53, 54, 55, 56, 57, 58, 59, 60
sT = [61, 62, 63, 64, 65, 66, 67]
sLW, sMB = 68, 69
sMask = 70
sBI, sN, sBase, sRot, sWoB, sOB = 72, 73, 74, 75, 78, 79
sKQ = 3
sSt = 80
sPar = 100
sHS = 28
sGB = 29
vWo = 0
vK, vK2, vV, vV2 = 1, 2, 3, 4
vM_, vL, vAl, vT0, vT1, vMn, vLane = 5, 6, 7, 8, 9, 10, 11
vP = 12; vY = 16; vVt = 24; vQ = 32; vO = 40; vD = 72; vKB = 104; vVB = 136; vSP = 168
vK1 = 168; vV1 = 200
vX4 = 252
QP = 0
CB = 0; RB = 32768
LW = 65536; LWS = 11264
QF = LW + 8 * LWS; QFS = 272
ML = QF + 16 * QFS
LDS = ML + 512
assert LDS <= 163840
MBS = 12288
SCALE = (128 ** -0.5) * math.log2(math.e)

def stamp(g, i):
    if not DBG: return
    g("s_memrealtime s[76:77]")
    g("s_waitcnt lgkmcnt(0)")
    g(f"s_mov_b32 {sr(sSt+i)}, s76")
def stamp_sel(g, i, s):
    if not DBG: return
    g("s_memrealtime s[76:77]")
    g("s_waitcnt lgkmcnt(0)")
    g(f"s_cmp_eq_u32 {sr(s)}, 0")
    g(f"s_cselect_b32 {sr(sSt+i)}, s76, {sr(sSt+i)}")
    g(f"s_cselect_b32 {sr(sSt+i+1)}, {sr(sSt+i+1)}, s76")
def stamp_flush(g, n):
    if not DBG: return
    g("s_mov_b32 s96, s18"); g("s_mov_b32 s97, s19"); g("s_mov_b32 s98, 0x2000000"); g("s_mov_b32 s99, 0x00020000")
    g("s_lshl_b32 s76, s2, 3"); g(f"s_add_u32 s76, s76, {sr(sW)}"); g("s_lshl_b32 s76, s76, 6"); g("s_add_u32 s76, s76, 0x1000000")
    g("s_mov_b64 exec, 1")
    for i in range(n):
        g(f"v_mov_b32 v1, {sr(sSt+i)}")
        g(f"buffer_store_dword v1, off, s[96:99], s76 offset:{4*i}")
    g("s_mov_b64 exec, -1")

def srd(g, d, p, size):
    g(f"s_mov_b32 {sr(d)}, {sr(p)}")
    g(f"s_mov_b32 {sr(d+1)}, {sr(p+1)}")
    g(f"s_mov_b32 {sr(d+2)}, {size:#x}")
    g(f"s_mov_b32 {sr(d+3)}, 0x00020000")

def koffs(i):
    G_, j = i >> 1, i & 1
    return (vK2 if G_ >= 2 else vK), (G_ & 1) * 2048 + 128 * j
def voffs(i):
    return (vV2 if i >= 4 else vV), 1024 * (i % 4)
def kload(buf, i, so):
    a, o = koffs(i)
    return f"buffer_load_dwordx4 {vr(buf+4*i,4)}, {vr(a)}, {sr(sK,4)}, {sr(so)} offen offset:{o} nt"
def vload(buf, i, so):
    a, o = voffs(i)
    return f"buffer_load_dwordx4 {vr(buf+4*i,4)}, {vr(a)}, {sr(sV,4)}, {sr(so)} offen offset:{o} nt"

def advance(g):
    g(f"s_mov_b32 {sr(sCur)}, {sr(sNxt)}")
    g(f"s_add_u32 {sr(sN)}, {sr(sN)}, 1")
    g(f"s_add_u32 {sr(sRot)}, {sr(sRot)}, 0x10000")
    g(f"s_and_b32 {sr(sRot)}, {sr(sRot)}, 0x70000")
    g(f"s_cmp_eq_u32 {sr(sN)}, 7")
    g(f"s_cselect_b32 {sr(sT[0])}, 0x1000000, 0")
    g(f"s_add_u32 {sr(sBase)}, {sr(sBase)}, {sr(sT[0])}")
    g(f"s_add_u32 {sr(sNxt)}, {sr(sBase)}, {sr(sRot)}")

def perm4(g, dst, rows, e):
    sel = sSelHi if (e & 1) else sSelLo
    for t in range(4):
        g(f"v_perm_b32 {vr(dst+t)}, {vr(rows[2*t+1] + (e>>1))}, {vr(rows[2*t] + (e>>1))}, {sr(sel)}")

def perm_mfma(g, rows, accbase, bfrag, first, es=range(8)):
    es = list(es)
    perm4(g, vVt + 4 * (es[0] & 1), rows, es[0])
    for n, e in enumerate(es):
        if n + 1 < len(es): perm4(g, vVt + 4 * (es[n+1] & 1), rows, es[n + 1])
        else: g("s_nop 1")
        T = vVt + 4 * (e & 1)
        a = accbase + 4 * e
        c = "0" if first else vr(a, 4)
        g(f"v_mfma_f32_16x16x32_bf16 {vr(a,4)}, {vr(T,4)}, {vr(bfrag,4)}, {c}")

def xlane(g, x, t, op):
    g(f"v_mov_b32 {vr(t)}, {vr(x)}")
    g("s_nop 1")
    g(f"v_permlane16_swap_b32 {vr(t)}, {vr(x)}")
    g(f"{op} {vr(x)}, {vr(x)}, {vr(t)}")
    g(f"v_mov_b32 {vr(t)}, {vr(x)}")
    g("s_nop 1")
    g(f"v_permlane32_swap_b32 {vr(t)}, {vr(x)}")
    g(f"{op} {vr(x)}, {vr(x)}, {vr(t)}")

def qk(g, KB):
    def M(D, G_):
        for j in range(2):
            c = "0" if j == 0 else vr(D, 16)
            g(f"v_mfma_f32_32x32x16_bf16 {vr(D,16)}, {vr(KB + 4*(2*G_+j), 4)}, {vr(vQ + 4*j, 4)}, {c}")
    def red(D, G_):
        for i in range(4):
            g(f"v_add_f32_dpp {vr(D+4*i)}, {vr(D+4*i+1)}, {vr(D+4*i)} row_ror:8 row_mask:0x5 bank_mask:0xf")
            g(f"v_add_f32_dpp {vr(D+4*i)}, {vr(D+4*i+3)}, {vr(D+4*i+2)} row_ror:8 row_mask:0xa bank_mask:0xf")
        g("s_nop 1")
        g(f"v_permlane16_swap_b32 {vr(D)}, {vr(D+4)}")
        g(f"v_permlane16_swap_b32 {vr(D+8)}, {vr(D+12)}")
        g(f"v_add_f32 {vr(vY+2*G_)}, {vr(D)}, {vr(D+4)}")
        g(f"v_add_f32 {vr(vY+2*G_+1)}, {vr(D+8)}, {vr(D+12)}")
    D0, D1 = vD, vD + 16
    M(D0, 0); M(D1, 1)
    g("s_nop 9")
    red(D0, 0); M(D0, 2); red(D1, 1); M(D1, 3); red(D0, 2); red(D1, 3)

def sm1(g):
    Y = vY
    g(f"v_max3_f32 {vr(vT0)}, {vr(Y)}, {vr(Y+1)}, {vr(Y+2)}")
    g(f"v_max3_f32 {vr(vT1)}, {vr(Y+3)}, {vr(Y+4)}, {vr(Y+5)}")
    g(f"v_max3_f32 {vr(vT0)}, {vr(vT0)}, {vr(Y+6)}, {vr(Y+7)}")
    g(f"v_max_f32 {vr(vT0)}, {vr(vT0)}, {vr(vT1)}")
    xlane(g, vT0, vT1, "v_max_f32")
    g(f"v_mul_f32 {vr(vT0)}, {sr(sC)}, {vr(vT0)}")
    g(f"v_max_f32 {vr(vMn)}, {vr(vM_)}, {vr(vT0)}")
    g(f"v_sub_f32 {vr(vT1)}, {vr(vM_)}, {vr(vMn)}")
    g(f"v_exp_f32 {vr(vAl)}, {vr(vT1)}")
    g(f"v_mov_b32 {vr(vM_)}, {vr(vMn)}")
    for i in range(8):
        g(f"v_fma_f32 {vr(Y+i)}, {vr(Y+i)}, {sr(sC)}, -{vr(vMn)}")
    for i in range(8):
        g(f"v_exp_f32 {vr(Y+i)}, {vr(Y+i)}")
    g(f"v_mul_f32 {vr(vL)}, {vr(vL)}, {vr(vAl)}")
    for u in range(4):
        g(f"v_cvt_pk_bf16_f32 {vr(vP+u)}, {vr(Y+2*u)}, {vr(Y+2*u+1)}")
    g(f"v_add_f32 {vr(vT0)}, {vr(Y)}, {vr(Y+1)}")
    g(f"v_add_f32 {vr(vT1)}, {vr(Y+2)}, {vr(Y+3)}")
    g(f"v_add_f32 {vr(Y+4)}, {vr(Y+4)}, {vr(Y+5)}")
    g(f"v_add_f32 {vr(Y+6)}, {vr(Y+6)}, {vr(Y+7)}")
    g(f"v_add_f32 {vr(vT0)}, {vr(vT0)}, {vr(vT1)}")
    g(f"v_add_f32 {vr(Y+4)}, {vr(Y+4)}, {vr(Y+6)}")
    g(f"v_add_f32 {vr(vL)}, {vr(vL)}, {vr(vT0)}")
    g(f"v_add_f32 {vr(vL)}, {vr(vL)}, {vr(Y+4)}")
def sm2(g):
    for i in range(32):
        g(f"v_mul_f32 {vr(vO+i)}, {vr(vO+i)}, {vr(vAl)}")
def pv(g, VB, es=range(8)):
    perm_mfma(g, [VB + 4 * i for i in range(8)], vO, vP, False, es)

def load_qfrag(g):
    g(f"v_and_b32 {vr(vT0)}, 7, {vr(vLane)}")
    g(f"v_lshrrev_b32 {vr(vT1)}, 3, {vr(vLane)}")
    g(f"v_mul_u32_u24 {vr(vT0)}, {QFS}, {vr(vT0)}")
    g(f"v_lshl_add_u32 {vr(vT0)}, {vr(vT1)}, 4, {vr(vT0)}")
    g(f"s_mul_i32 {sr(sT[0])}, {sr(sBI)}, {8*QFS}")
    g(f"s_add_u32 {sr(sT[0])}, {sr(sT[0])}, {QF}")
    g(f"v_add_u32 {vr(vT0)}, {sr(sT[0])}, {vr(vT0)}")
    for j in range(2):
        g(f"ds_read_b128 {vr(vQ+4*j,4)}, {vr(vT0)} offset:{128*j}")
def reset_state(g):
    g(f"v_mov_b32 {vr(vM_)}, 0xff7fffff")
    g(f"v_mov_b32 {vr(vL)}, 0")
    for i in range(32):
        g(f"v_mov_b32 {vr(vO+i)}, 0")

def dwait(g, ca, cb):
    if ca == cb or PAR == "none":
        g(f"s_waitcnt vmcnt({ca})"); return
    l = g.newlabel()
    g(f"s_cbranch_vccnz {l}")
    g(f"s_waitcnt vmcnt({ca})")
    g.label(l)
    g(f"s_waitcnt vmcnt({cb})")

def swz_write(g, base_s, src, A):
    g(f"v_and_b32 {vr(vT0)}, 15, {vr(vLane)}")
    g(f"v_lshrrev_b32 {vr(vT1)}, 4, {vr(vLane)}")
    g(f"v_lshlrev_b32 {vr(vT1)}, 7, {vr(vT1)}")
    g(f"v_lshlrev_b32 {vr(A)}, 5, {vr(vT0)}")
    g(f"v_xor_b32 {vr(vT1)}, {vr(vT1)}, {vr(A)}")
    g(f"v_lshl_add_u32 {vr(A)}, {vr(vT0)}, 9, {vr(vT1)}")
    g(f"v_add_u32 {vr(A)}, {sr(base_s)}, {vr(A)}")
    for k in range(1, 4):
        g(f"v_xor_b32 {vr(A+k)}, {32*k}, {vr(A)}")

def kernel(g):
    NAME = "standalone__mha_block_cached__sampling_kernel"
    g.raw(f".globl {NAME}\n.p2align 8\n.type {NAME},@function")
    g.label(NAME)
    g("s_cmp_ge_u32 s2, 256")
    g("s_cbranch_scc1 L_end")
    g("s_load_dwordx16 s[4:19], s[0:1], 0")
    g(f"v_lshrrev_b32 {vr(vT0)}, 6, v0")
    g(f"v_and_b32 {vr(vLane)}, 63, v0")
    g(f"v_readfirstlane_b32 {sr(sW)}, {vr(vT0)}")
    if HMAP == "A":
        g(f"s_and_b32 {sr(sH)}, s2, 31")
    elif HMAP == "B":
        g(f"s_and_b32 {sr(sT[0])}, s2, 7")
        g(f"s_bfe_u32 {sr(sT[1])}, s2, 0x20003")
        g(f"s_lshl_b32 {sr(sH)}, {sr(sT[0])}, 2")
        g(f"s_or_b32 {sr(sH)}, {sr(sH)}, {sr(sT[1])}")
    else:
        g(f"s_and_b32 {sr(sH)}, s2, 1")
        g(f"s_bfe_u32 {sr(sT[1])}, s2, 0x20003")
        g(f"s_lshl_b32 {sr(sT[1])}, {sr(sT[1])}, 1")
        g(f"s_or_b32 {sr(sH)}, {sr(sH)}, {sr(sT[1])}")
        g(f"s_bfe_u32 {sr(sT[1])}, s2, 0x20001")
        g(f"s_lshl_b32 {sr(sT[1])}, {sr(sT[1])}, 3")
        g(f"s_or_b32 {sr(sH)}, {sr(sH)}, {sr(sT[1])}")
    g(f"s_and_b32 {sr(sCB)}, {sr(sH)}, 7")
    g(f"s_lshr_b32 {sr(sKQ)}, {sr(sH)}, 3")
    g(f"s_lshr_b32 {sr(sBP)}, s2, 5")
    g(f"s_mov_b32 {sr(sSelLo)}, 0x05040100")
    g(f"s_mov_b32 {sr(sSelHi)}, 0x07060302")
    m, gg = vT0, vT1
    g(f"v_and_b32 {vr(m)}, 15, {vr(vLane)}")
    g(f"v_lshrrev_b32 {vr(gg)}, 4, {vr(vLane)}")
    g(f"v_bfe_u32 {vr(vK)}, {vr(vLane)}, 4, 1")
    g(f"v_lshlrev_b32 {vr(vK)}, 10, {vr(vK)}")
    g(f"v_bfe_u32 {vr(vK2)}, {vr(vLane)}, 2, 1")
    g(f"v_lshl_add_u32 {vr(vK)}, {vr(vK2)}, 9, {vr(vK)}")
    g(f"v_bfe_u32 {vr(vK2)}, {vr(vLane)}, 3, 1")
    g(f"v_lshl_add_u32 {vr(vK)}, {vr(vK2)}, 8, {vr(vK)}")
    g(f"v_lshrrev_b32 {vr(vK2)}, 5, {vr(vLane)}")
    g(f"v_lshl_add_u32 {vr(vK)}, {vr(vK2)}, 6, {vr(vK)}")
    g(f"v_and_b32 {vr(vK2)}, 3, {vr(vLane)}")
    g(f"v_lshl_add_u32 {vr(vK)}, {vr(vK2)}, 4, {vr(vK)}")
    g(f"v_add_u32 {vr(vK2)}, 0x1000, {vr(vK)}")
    g(f"v_lshlrev_b32 {vr(vV)}, 4, {vr(vLane)}")
    g(f"v_add_u32 {vr(vV2)}, 0x1000, {vr(vV)}")
    vWq, vX = vM_, vL
    g(f"v_lshlrev_b32 {vr(vWq)}, 16, {vr(gg)}")
    g(f"v_lshl_add_u32 {vr(vWq)}, {vr(m)}, 4, {vr(vWq)}")
    g(f"v_lshlrev_b32 {vr(vX)}, 11, {vr(m)}")
    g(f"v_lshl_add_u32 {vr(vX)}, {vr(gg)}, 4, {vr(vX)}")
    g(f"v_lshlrev_b32 {vr(vWo)}, 12, {vr(gg)}")
    g(f"v_lshl_add_u32 {vr(vWo)}, {vr(m)}, 4, {vr(vWo)}")
    for i in range(4): g(f"v_mov_b32 {vr(vO+i)}, -1")
    sXo, sWqB, sO0 = sT[4], sT[5], sT[6]
    g(f"s_lshl_b32 {sr(sXo)}, {sr(sBP)}, 15")
    g(f"s_lshl_b32 {sr(sT[1])}, {sr(sW)}, 8")
    g(f"s_add_u32 {sr(sXo)}, {sr(sXo)}, {sr(sT[1])}")
    g(f"s_lshl_b32 {sr(sT[1])}, {sr(sW)}, 20")
    g(f"s_lshl_b32 {sr(sT[2])}, {sr(sH)}, 8")
    g(f"s_add_u32 {sr(sWqB)}, {sr(sT[1])}, {sr(sT[2])}")
    g(f"s_lshl_b32 {sr(sT[1])}, {sr(sKQ)}, 3")
    g(f"s_add_u32 {sr(sT[1])}, {sr(sT[1])}, {sr(sW)}")
    g(f"s_lshl_b32 {sr(sT[1])}, {sr(sT[1])}, 18")
    g(f"s_lshl_b32 {sr(sT[2])}, {sr(sCB)}, 8")
    g(f"s_add_u32 {sr(sWoB)}, {sr(sT[1])}, {sr(sT[2])}")
    g(f"s_mul_i32 {sr(sLW)}, {sr(sW)}, {LWS}")
    g(f"s_add_u32 {sr(sLW)}, {sr(sLW)}, {LW}")
    g(f"s_lshl_b32 {sr(sT[2])}, {sr(sBP)}, 5")
    g(f"s_add_u32 {sr(sT[2])}, {sr(sT[2])}, {sr(sH)}")
    g(f"s_mul_i32 {sr(sMB)}, {sr(sT[2])}, {MBS}")
    g(f"s_lshl_b32 {sr(sT[2])}, {sr(sBP)}, 6")
    g(f"s_add_u32 {sr(sT[2])}, {sr(sT[2])}, {sr(sH)}")
    g(f"s_lshl_b32 {sr(sBase)}, {sr(sT[2])}, 19")
    g(f"s_lshl_b32 {sr(sT[2])}, {sr(sW)}, 13")
    g(f"s_add_u32 {sr(sBase)}, {sr(sBase)}, {sr(sT[2])}")
    g(f"s_lshl_b32 {sr(sRot)}, {sr(sBP)}, 16")
    g(f"s_add_u32 {sr(sNxt)}, {sr(sBase)}, {sr(sRot)}")
    g(f"s_mov_b32 {sr(sN)}, -1")
    advance(g)
    g(f"s_mov_b32 {sr(sO0)}, {sr(sCur)}")
    advance(g)
    g(f"s_mov_b32 {sr(sC)}, {f32bits(SCALE):#x}")
    g(f"s_mov_b32 {sr(sMask)}, 0x00ff00ff")
    g(f"s_mov_b32 {sr(sMask+1)}, 0x00ff00ff")
    g(f"s_mov_b32 {sr(sBI)}, 0")
    if PAR == "xcc":
        g(f"s_getreg_b32 {sr(sPar)}, hwreg(HW_REG_XCC_ID, 0, 1)")
    elif PAR == "wg":
        g(f"s_and_b32 {sr(sPar)}, s2, 1")
    else:
        g(f"s_mov_b32 {sr(sPar)}, 0")
    g(f"s_mov_b32 {sr(sPar+1)}, 0")
    g(f"s_mov_b64 vcc, {sr(sPar,2)}")
    if PRIO:
        g(f"s_cmp_lt_u32 {sr(sW)}, 4")
        g("s_cbranch_scc1 L_noprio")
        g(f"s_setprio {PRIO}")
        g.label("L_noprio")
    if DBG2: g("s_memrealtime s[94:95]")
    g("s_waitcnt lgkmcnt(0)")
    stamp(g, 0)
    srd(g, sX, 4, 262144)
    srd(g, sWQ, 10, 8388608)
    srd(g, sK, 6, 0x10000000)
    srd(g, sV, 8, 0x10000000)
    srd(g, sO, 18, 256 * MBS)
    stgA = [vD + 4 * i for i in range(8)]
    stgB = [232 + 4 * i for i in range(6)] + [vY, vY + 4]
    stg = [stgA, stgB]
    sQS = sOB
    def xload(s):
        if QROT:
            g(f"s_add_u32 {sr(sT[3])}, {sr(sBP)}, {s}")
            g(f"s_and_b32 {sr(sT[3])}, {sr(sT[3])}, 3")
            g(f"s_lshl_b32 {sr(sT[3])}, {sr(sT[3])}, 6")
            g(f"s_add_u32 {sr(sT[3])}, {sr(sT[3])}, {sr(sXo)}")
            g.vm(f"buffer_load_dwordx4 {vr(vQ+4*(s&1),4)}, {vr(vX)}, {sr(sX,4)}, {sr(sT[3])} offen", f"x{s}")
        else:
            g.vm(f"buffer_load_dwordx4 {vr(vQ+4*(s&1),4)}, {vr(vX)}, {sr(sX,4)}, {sr(sXo)} offen offset:{64*s}", f"x{s}")
    def wqload(s, i):
        if QROT:
            if i == 0:
                g(f"s_add_u32 {sr(sQS)}, {sr(sBP)}, {s}")
                g(f"s_and_b32 {sr(sQS)}, {sr(sQS)}, 3")
                g(f"s_lshl_b32 {sr(sQS)}, {sr(sQS)}, 18")
                g(f"s_add_u32 {sr(sQS)}, {sr(sQS)}, {sr(sWqB)}")
            g(f"s_add_u32 {sr(sT[3])}, {sr(sQS)}, {i*8192:#x}")
        else:
            g(f"s_add_u32 {sr(sT[3])}, {sr(sWqB)}, {(32*s+i)*8192:#x}")
        g.vm(f"buffer_load_dwordx4 {vr(stg[s&1][i],4)}, {vr(vWq)}, {sr(sWQ,4)}, {sr(sT[3])} offen nt", f"wq{s}")
    kv = [(None, kload(vKB, i, sO0), "K0") for i in range(8)] + [(None, vload(vVB, i, sO0), "V0") for i in range(8)] + \
         [(None, kload(vK1, i, sCur), "K1") for i in range(8)] + [(None, vload(vV1, i, sCur), "V1") for i in range(8)]
    for i in range(8):
        a, o = koffs(i)
        kv.append((1024 * i - o, f"buffer_load_dwordx4 {vr(a)}, {sr(sK,4)}, {sr(sNxt)} offen offset:{o} nt lds", "K2L"))
    for i in range(NLDS - 8):
        a, o = voffs(i)
        kv.append((8192 + 1024 * i - o, f"buffer_load_dwordx4 {vr(a)}, {sr(sV,4)}, {sr(sNxt)} offen offset:{o} nt lds", "V2L"))
    NKV = len(kv)
    def kvissue(k, thr=True):
        mo, s, tag = kv[k]
        if mo is not None:
            if mo >= 0: g(f"s_add_u32 m0, {sr(sLW)}, {mo}")
            else: g(f"s_sub_u32 m0, {sr(sLW)}, {-mo}")
        if thr: g.throttle(WQ)
        if mo is not None: g("s_nop 0")
        g.vm(s, tag)
    def qcomp(s):
        g.wait_tag(f"wq{s}"); g.wait_tag(f"x{s}")
        perm_mfma(g, stg[s & 1], vO, vQ + 4 * (s & 1), s == 0)
    xload(0); xload(1)
    kvi = 0
    NKV_IN = NKV - QTAIL
    for idx in range(32):
        s, i = idx // 8, idx % 8
        if i == 0 and s >= 2:
            qcomp(s - 2)
            xload(s)
        g.throttle(WQ)
        wqload(s, i)
        while kvi < (idx + 1) * NKV_IN // 32:
            kvissue(kvi); kvi += 1
        if idx == 3:
            g(f"s_lshl_b32 {sr(sT[1])}, {sr(sW)}, 10")
            g(f"s_add_u32 {sr(sT[1])}, {sr(sT[1])}, {sr(sMB)}")
            g.vm(f"buffer_store_dwordx4 {vr(vO,4)}, {vr(vV)}, {sr(sO,4)}, {sr(sT[1])} offen{CLR}", "clr")
            g(f"s_lshl_b32 {sr(sT[1])}, {sr(sW)}, 9")
            g(f"s_add_u32 {sr(sT[1])}, {sr(sT[1])}, {sr(sMB)}")
            g(f"s_add_u32 {sr(sT[1])}, {sr(sT[1])}, 8192")
            g("s_mov_b32 exec_hi, 0")
            g.vm(f"buffer_store_dwordx4 {vr(vO,4)}, {vr(vV)}, {sr(sO,4)}, {sr(sT[1])} offen{CLR}", "clr")
            g("s_mov_b32 exec_hi, -1")
            srd(g, sWO, 12, 8388608)
            srd(g, sOUT, 14, 262144)
            srd(g, sDBG, 16, 256)
    qcomp(2)
    half = kvi + (NKV - kvi) // 2
    while kvi < half:
        kvissue(kvi); kvi += 1
    qcomp(3)
    while kvi < NKV:
        kvissue(kvi, False); kvi += 1
    stamp(g, 1)
    if PRIO: g("s_setprio 0")
    vA = vY
    g(f"s_lshl_b32 {sr(sT[0])}, {sr(sW)}, 13")
    g(f"v_add_u32 {vr(vA)}, {sr(sT[0])}, {vr(vV)}")
    g("s_nop 7")
    for e in range(8):
        g(f"ds_write_b128 {vr(vA)}, {vr(vO+4*e,4)} offset:{QP + 1024*e}")
    g(f"s_lshl_b32 {sr(sT[0])}, {sr(sW)}, 10")
    g(f"v_add_u32 {vr(vA)}, {sr(sT[0])}, {vr(vV)}")
    g("s_waitcnt lgkmcnt(0)")
    g("s_barrier")
    for p in range(8):
        g(f"ds_read_b128 {vr(vO+4*p,4)}, {vr(vA)} offset:{QP + 8192*p}")
    g(f"v_and_b32 {vr(vT0)}, 15, {vr(vLane)}")
    g(f"v_lshrrev_b32 {vr(vT1)}, 4, {vr(vLane)}")
    g(f"v_mul_u32_u24 {vr(vA+1)}, {QFS}, {vr(vT0)}")
    g(f"v_lshl_add_u32 {vr(vA+1)}, {vr(vT1)}, 6, {vr(vA+1)}")
    g(f"s_lshl_b32 {sr(sT[0])}, {sr(sW)}, 1")
    g(f"s_add_u32 {sr(sT[0])}, {sr(sT[0])}, {QF}")
    g(f"v_add_u32 {vr(vA+1)}, {sr(sT[0])}, {vr(vA+1)}")
    g("s_waitcnt lgkmcnt(0)")
    for p in (4, 2, 1):
        for q in range(p):
            for r in range(4):
                g(f"v_add_f32 {vr(vO+4*q+r)}, {vr(vO+4*q+r)}, {vr(vO+4*(q+p)+r)}")
    g(f"v_cvt_pk_bf16_f32 {vr(vO+4)}, {vr(vO)}, {vr(vO+1)}")
    g(f"v_cvt_pk_bf16_f32 {vr(vO+5)}, {vr(vO+2)}, {vr(vO+3)}")
    g(f"ds_write_b16 {vr(vA+1)}, {vr(vO+4)} offset:0")
    g(f"ds_write_b16_d16_hi {vr(vA+1)}, {vr(vO+4)} offset:16")
    g(f"ds_write_b16 {vr(vA+1)}, {vr(vO+5)} offset:32")
    g(f"ds_write_b16_d16_hi {vr(vA+1)}, {vr(vO+5)} offset:48")
    g("s_waitcnt lgkmcnt(0)")
    g("s_barrier")
    load_qfrag(g)
    reset_state(g)
    advance(g)
    g(f"s_mul_i32 {sr(sGB)}, {sr(sBP)}, {32*MBS}")
    g(f"v_add_u32 {vr(vX4)}, {sr(sLW)}, {vr(vV)}")
    g("s_waitcnt lgkmcnt(0)")
    stamp(g, 2)
    g.wait_tag("K0"); qk(g, vKB)
    for i in range(3): g.vm(kload(vKB, i, sNxt), "K3")
    g(f"s_cmp_lg_u32 {sr(sW)}, 7")
    g("s_cbranch_scc1 L_nosig")
    g(f"s_lshl_b32 {sr(sT[2])}, {sr(sBP)}, 5")
    g(f"v_mov_b32 {vr(vT0)}, 1")
    g("s_mov_b64 exec, 1")
    g(f"buffer_atomic_add {vr(vT0)}, off, {sr(sDBG,4)}, {sr(sT[2])} sc1")
    g("s_mov_b64 exec, -1")
    g.label("L_nosig")
    sm1(g); sm2(g)
    g.wait_tag("V0"); pv(g, vVB)
    NV = NLDS - 8
    for i in range(NV, 8): g.vm(vload(vVB, i, sCur), "V2")
    g.wait_tag("K1"); qk(g, vK1)
    g.wait_tag("V2L"); g.wait_tag("K2L")
    for i in range(8):
        g(f"ds_read_b128 {vr(vK1+4*i,4)}, {vr(vX4)} offset:{1024*i}")
    for i in range(NV):
        g(f"ds_read_b128 {vr(vVB+4*i,4)}, {vr(vX4)} offset:{8192+1024*i}")
    for i in range(3, 6): g.vm(kload(vKB, i, sNxt), "K3")
    sm1(g); sm2(g)
    pv(g, vV1)
    for i in range(6, 8): g.vm(kload(vKB, i, sNxt), "K3")
    g("s_waitcnt lgkmcnt(0)")
    qk(g, vK1)
    sm1(g); sm2(g)
    g.wait_tag("V2"); pv(g, vVB)
    stamp(g, 3)
    def cnt(full, pos, Wn):
        c = 0; k = 0; p = pos - 1
        while True:
            if full[p] == "K":
                k += 1
                if k == Wn: return c
            c += 1; p -= 1
    g.label("L_xtop")
    advance(g)
    sWS = sOB
    if WROT: g(f"s_add_u32 {sr(sWS)}, {sr(sN)}, {sr(sBP)}")
    else: g(f"s_mov_b32 {sr(sWS)}, {sr(sN)}")
    g(f"s_add_u32 {sr(sWS)}, {sr(sWS)}, 1")
    g(f"s_and_b32 {sr(sWS)}, {sr(sWS)}, 3")
    g(f"s_lshl_b32 {sr(sWS)}, {sr(sWS)}, 16")
    g(f"s_add_u32 {sr(sWS)}, {sr(sWS)}, {sr(sWoB)}")
    seq = ["K"] * 8
    for i in range(8):
        dwait(g, cnt(seq, len(seq), WA), cnt(seq, len(seq), WB))
        g(vload(vVB, i, sCur)); seq.append("K")
        if not NOW:
            g(f"s_add_u32 m0, {sr(sLW)}, {1024*i}")
            g(f"s_add_u32 {sr(sT[3])}, {sr(sWS)}, {(8*(i&3) + (i>>2))*2048:#x}")
            g(f"buffer_load_dwordx4 {vr(vWo)}, {sr(sWO,4)}, {sr(sT[3])} offen nt lds"); seq.append("X")
        if i == WB - 1: qk(g, vKB)
        if i == WB: sm1(g)
        if i == WB + 1: sm2(g)
    for i in range(8):
        dwait(g, cnt(seq, len(seq), WA), cnt(seq, len(seq), WB))
        g(kload(vKB, i, sNxt)); seq.append("K")
        if i == WB - 1: pv(g, vVB)
    for i in range(8):
        g(f"ds_read_b128 {vr(vD+4*i,4)}, {vr(vX4)} offset:{1024*i}")
    rows = [vD + 4 * i for i in range(8)]
    g(f"s_cmp_eq_u32 {sr(sN)}, 4")
    g("s_cbranch_scc1 L_s1")
    g(f"s_cmp_eq_u32 {sr(sN)}, 5")
    g("s_cbranch_scc1 L_s2")
    g(f"s_cmp_eq_u32 {sr(sN)}, 6")
    g("s_cbranch_scc1 L_s3")
    g("s_waitcnt lgkmcnt(0)")
    for e in range(8): perm4(g, vSP + 4 * e, rows, e)
    g("s_branch L_xtop")
    g.label("L_s1")
    g("s_waitcnt lgkmcnt(0)")
    for e in range(8): perm4(g, vSP + 32 + 4 * e, rows, e)
    g("s_branch L_xtop")
    g.label("L_s2")
    g("s_waitcnt lgkmcnt(0)")
    for e in range(5): perm4(g, vSP + 64 + 4 * e, rows, e)
    for e in range(5, 8): perm4(g, vY + 4 * (e - 5), rows, e)
    for e in range(5, 8): g(f"ds_write_b128 {vr(vX4)}, {vr(vY+4*(e-5),4)} offset:{8192+1024*(e-5)}")
    g("s_waitcnt lgkmcnt(0)")
    g("s_branch L_xtop")
    g.label("L_s3")
    g("s_waitcnt lgkmcnt(0)")
    for hf in range(2):
        for e in range(4): perm4(g, vY + 4 * e, rows, 4 * hf + e)
        for e in range(4): g(f"ds_write_b128 {vr(vX4)}, {vr(vY+4*e,4)} offset:{1024*(4*hf+e)}")
        g("s_waitcnt lgkmcnt(0)")
    stamp(g, 12)
    g.label("L_top")
    advance(g)
    for i in range(8):
        dwait(g, WA - 1, WB - 1)
        g(vload(vVB, i, sCur))
        if i == WB - 1:
            g.label("L_qk")
            qk(g, vKB)
        if i == WB: sm1(g)
        if i == WB + 1: sm2(g)
    g(f"s_cmp_eq_u32 {sr(sN)}, 15")
    g("s_cbranch_scc1 L_last")
    for i in range(WB):
        dwait(g, WA - 1, WB - 1)
        g(kload(vKB, i, sNxt))
    g.label("L_pv")
    pv(g, vVB)
    g(f"s_and_b32 {sr(sT[0])}, {sr(sN)}, 7")
    g(f"s_cmp_eq_u32 {sr(sT[0])}, 7")
    g("s_cbranch_scc1 L_hookC")
    g(f"s_cmp_eq_u32 {sr(sN)}, {OPB}")
    g("s_cbranch_scc1 L_hookO")
    g(f"s_cmp_eq_u32 {sr(sN)}, {OPF}")
    g("s_cbranch_scc1 L_hookF")
    g.label("L_krest")
    for i in range(WB, 8):
        dwait(g, WA - 1, WB - 1)
        g(kload(vKB, i, sNxt))
    g("s_branch L_top")
    g.label("L_last")
    g("s_waitcnt vmcnt(0)")
    g("s_branch L_pv")
    def preissue():
        for i in range(WB, 8): g(kload(vKB, i, sNxt))
        advance(g)
        for i in range(WB): g(vload(vVB, i, sCur))
    def back_to_qk():
        g(f"s_mov_b64 vcc, {sr(sPar,2)}")
        g(f"s_waitcnt vmcnt({WB})")
        g("s_branch L_qk")
    g.label("L_hookC")
    stamp_sel(g, 4, sBI)
    g(f"s_cmp_eq_u32 {sr(sBI)}, 1")
    g("s_cbranch_scc1 L_hookC2")
    preissue()
    g.label("L_hookC2")
    if DBG2:
        g("s_memrealtime s[76:77]")
        g("s_waitcnt lgkmcnt(0)")
        g("s_mov_b32 s91, s76")
    xlane(g, vL, vT1, "v_add_f32")
    vA = vY
    g(f"s_lshl_b32 {sr(sT[0])}, {sr(sW)}, 12")
    if CB: g(f"s_add_u32 {sr(sT[0])}, {sr(sT[0])}, {CB}")
    swz_write(g, sT[0], vO, vA)
    g(f"s_lshl_b32 {sr(sT[0])}, {sr(sW)}, 2")
    g(f"s_add_u32 {sr(sT[0])}, {sr(sT[0])}, {ML}")
    g(f"v_lshlrev_b32 {vr(vA+4)}, 6, {vr(vT0)}")
    g(f"v_add_u32 {vr(vA+4)}, {sr(sT[0])}, {vr(vA+4)}")
    g(f"s_mov_b64 exec, {sr(sMask,2)}")
    for e in range(8):
        g(f"ds_write_b128 {vr(vA+(e>>1))}, {vr(vO+4*e,4)} offset:{16*(e&1)}")
    g("s_mov_b64 exec, 0xff")
    g(f"ds_write_b32 {vr(vA+4)}, {vr(vM_)}")
    g(f"ds_write_b32 {vr(vA+4)}, {vr(vL)} offset:32")
    g("s_mov_b64 exec, -1")
    g(f"v_bfe_u32 {vr(vT0)}, {vr(vLane)}, 2, 3")
    g(f"v_lshlrev_b32 {vr(vA+5)}, 6, {vr(vT0)}")
    g(f"v_add_u32 {vr(vA+5)}, {ML}, {vr(vA+5)}")
    g(f"v_lshrrev_b32 {vr(vT1)}, 5, {vr(vLane)}")
    g(f"v_xor_b32 {vr(vT1)}, {vr(vT1)}, {vr(vT0)}")
    g(f"v_lshlrev_b32 {vr(vT1)}, 5, {vr(vT1)}")
    g(f"s_lshl_b32 {sr(sT[0])}, {sr(sW)}, 6")
    g(f"v_xor_b32 {vr(vT1)}, {sr(sT[0])}, {vr(vT1)}")
    g(f"v_lshl_add_u32 {vr(vA+6)}, {vr(vT0)}, 9, {vr(vT1)}")
    g(f"v_and_b32 {vr(vT0)}, 3, {vr(vLane)}")
    g(f"v_lshl_add_u32 {vr(vA+6)}, {vr(vT0)}, 3, {vr(vA+6)}")
    g("s_waitcnt lgkmcnt(0)")
    g("s_barrier")
    mm = vD
    for i in range(4):
        g(f"ds_read_b128 {vr(mm+4*i,4)}, {vr(vA+5)} offset:{16*i}")
    for p in range(8):
        g(f"ds_read_b64 {vr(vO+2*p,2)}, {vr(vA+6)} offset:{CB + 4096*p}")
    g(f"s_lshl_b32 {sr(sT[0])}, {sr(sBI)}, 11")
    g(f"s_add_u32 {sr(sT[0])}, {sr(sT[0])}, {sr(sMB)}")
    g(f"s_lshl_b32 {sr(sT[1])}, {sr(sW)}, 8")
    g(f"s_add_u32 {sr(sT[0])}, {sr(sT[0])}, {sr(sT[1])}")
    g(f"s_add_u32 {sr(sT[0])}, {sr(sT[0])}, 8192")
    g(f"v_lshlrev_b32 {vr(vA+2)}, 2, {vr(vLane)}")
    g("s_waitcnt lgkmcnt(8)")
    g(f"v_max3_f32 {vr(vT0)}, {vr(mm)}, {vr(mm+1)}, {vr(mm+2)}")
    g(f"v_max3_f32 {vr(vT1)}, {vr(mm+3)}, {vr(mm+4)}, {vr(mm+5)}")
    g(f"v_max3_f32 {vr(vT0)}, {vr(vT0)}, {vr(mm+6)}, {vr(mm+7)}")
    g(f"v_max_f32 {vr(vT0)}, {vr(vT0)}, {vr(vT1)}")
    for p in range(8):
        g(f"v_sub_f32 {vr(mm+p)}, {vr(mm+p)}, {vr(vT0)}")
    for p in range(8):
        g(f"v_exp_f32 {vr(mm+p)}, {vr(mm+p)}")
    g("s_nop 0")
    g(f"v_mul_f32 {vr(vT1)}, {vr(mm)}, {vr(mm+8)}")
    for p in range(1, 8):
        g(f"v_fmac_f32 {vr(vT1)}, {vr(mm+p)}, {vr(mm+8+p)}")
    g(f"v_rcp_f32 {vr(vT1)}, {vr(vT1)}")
    g("s_waitcnt lgkmcnt(0)")
    R0, R1 = vP, vP + 1
    g(f"v_mul_f32 {vr(R0)}, {vr(mm)}, {vr(vO)}")
    g(f"v_mul_f32 {vr(R1)}, {vr(mm)}, {vr(vO+1)}")
    for p in range(1, 8):
        g(f"v_fmac_f32 {vr(R0)}, {vr(mm+p)}, {vr(vO+2*p)}")
        g(f"v_fmac_f32 {vr(R1)}, {vr(mm+p)}, {vr(vO+2*p+1)}")
    g(f"v_mul_f32 {vr(R0)}, {vr(R0)}, {vr(vT1)}")
    g(f"v_mul_f32 {vr(R1)}, {vr(R1)}, {vr(vT1)}")
    g(f"v_cvt_pk_bf16_f32 {vr(R0)}, {vr(R0)}, {vr(R1)}")
    g(f"v_min_u32 {vr(R0)}, -2, {vr(R0)}")
    g(f"s_mov_b32 {sr(sT[3])}, 0x11111111")
    g(f"s_mov_b32 {sr(sT[4])}, 0x11111111")
    for k in range(1, 4):
        g(f"v_mov_b32_dpp {vr(vP+k)}, {vr(R0)} quad_perm:[{k},{k},{k},{k}] row_mask:0xf bank_mask:0xf")
    g(f"s_mov_b64 exec, {sr(sT[3],2)}")
    g(f"buffer_store_dwordx4 {vr(vP,4)}, {vr(vA+2)}, {sr(sO,4)}, {sr(sT[0])} offen{MST}")
    g("s_mov_b64 exec, -1")
    stamp_sel(g, 6, sBI)
    g(f"s_cmp_eq_u32 {sr(sBI)}, 1")
    g(f"s_mov_b32 {sr(sOB)}, 1")
    g("s_cbranch_scc1 L_hookO2")
    g(f"s_mov_b32 {sr(sBI)}, 1")
    load_qfrag(g)
    reset_state(g)
    g("s_waitcnt lgkmcnt(0)")
    g(f"s_lshl_b32 {sr(sT[2])}, {sr(sBP)}, 5")
    g(f"s_load_dword {sr(sHS)}, s[16:17], {sr(sT[2])}")
    g(f"s_mov_b64 vcc, {sr(sPar,2)}")
    g(f"s_waitcnt vmcnt({WB+1})")
    g("s_branch L_qk")
    g.label("L_hookO")
    preissue()
    g(f"s_mov_b32 {sr(sOB)}, 0")
    g("s_waitcnt lgkmcnt(0)")
    g(f"s_cmp_ge_u32 {sr(sHS)}, 32")
    g("s_cbranch_scc1 L_hookO2")
    g(f"s_lshl_b32 {sr(sT[2])}, {sr(sBP)}, 5")
    g(f"s_mov_b32 {sr(sT[4])}, 0")
    g.label("L_hspoll")
    g(f"buffer_load_dword {vr(vT0)}, off, {sr(sDBG,4)}, {sr(sT[2])} sc1")
    g("s_waitcnt vmcnt(0)")
    g(f"v_readfirstlane_b32 {sr(sT[5])}, {vr(vT0)}")
    g(f"s_add_u32 {sr(sT[4])}, {sr(sT[4])}, 1")
    g(f"s_cmp_ge_u32 {sr(sT[5])}, 32")
    g("s_cbranch_scc1 L_hookO2")
    g(f"s_cmp_ge_u32 {sr(sT[4])}, 0x20000")
    g("s_cbranch_scc1 L_hookO2")
    g("s_sleep 8")
    g("s_branch L_hspoll")
    g.label("L_hookO2")
    g(f"s_lshl_b32 {sr(sT[1])}, {sr(sKQ)}, 3")
    g(f"s_add_u32 {sr(sT[1])}, {sr(sT[1])}, {sr(sW)}")
    g(f"s_mul_i32 {sr(sT[1])}, {sr(sT[1])}, {MBS}")
    g(f"s_add_u32 {sr(sT[1])}, {sr(sT[1])}, {sr(sGB)}")
    g(f"s_lshl_b32 {sr(sT[2])}, {sr(sOB)}, 11")
    g(f"s_add_u32 {sr(sT[1])}, {sr(sT[1])}, {sr(sT[2])}")
    g(f"s_add_u32 {sr(sT[1])}, {sr(sT[1])}, 8192")
    g(f"v_and_b32 {vr(vT0)}, 7, {vr(vLane)}")
    g(f"v_lshrrev_b32 {vr(vT1)}, 4, {vr(vLane)}")
    g(f"v_lshlrev_b32 {vr(vT1)}, 7, {vr(vT1)}")
    g(f"v_lshl_add_u32 {vr(vAl)}, {vr(vT0)}, 4, {vr(vT1)}")
    Bf = [vY, vY + 4, vVt, vVt + 4]
    LT = [vP, vQ, vQ + 4, vX4]
    g(f"v_mov_b32 {vr(vMn)}, {vr(vX4)}")
    lf = [(2, e, 8192 + 1024 * (e - 5)) for e in range(5, 8)] + [(3, e, 1024 * e) for e in range(8)]
    def ldsread(k): g(f"ds_read_b128 {vr(LT[k % 4],4)}, {vr(vMn)} offset:{lf[k][2]}")
    for k in range(4): ldsread(k)
    g(f"s_mov_b32 {sr(sT[4])}, 0")
    bo = [sT[0], sT[2], sT[3], sT[5]]
    for s in range(4):
        if WROT:
            g(f"s_add_u32 {sr(bo[s])}, {sr(sBP)}, {s}")
            g(f"s_and_b32 {sr(bo[s])}, {sr(bo[s])}, 3")
            g(f"s_lshl_b32 {sr(bo[s])}, {sr(bo[s])}, 9")
            g(f"s_add_u32 {sr(bo[s])}, {sr(bo[s])}, {sr(sT[1])}")
        else:
            g(f"s_add_u32 {sr(bo[s])}, {sr(sT[1])}, {512*s}")
    g.label("L_poll")
    for s in range(4):
        g(f"buffer_load_dwordx4 {vr(Bf[s],4)}, {vr(vAl)}, {sr(sO,4)}, {sr(bo[s])} offen{MLD}")
    g("s_waitcnt vmcnt(0)")
    g(f"v_max3_u32 {vr(vT0)}, {vr(vY)}, {vr(vY+1)}, {vr(vY+2)}")
    g(f"v_max3_u32 {vr(vT1)}, {vr(vY+3)}, {vr(vY+4)}, {vr(vY+5)}")
    for k in range(6, 16, 4):
        g(f"v_max3_u32 {vr(vT0)}, {vr(vT0)}, {vr(vY+k)}, {vr(vY+k+1)}")
        if k + 3 < 16: g(f"v_max3_u32 {vr(vT1)}, {vr(vT1)}, {vr(vY+k+2)}, {vr(vY+k+3)}")
    g(f"v_max_u32 {vr(vT0)}, {vr(vT0)}, {vr(vT1)}")
    g(f"v_cmp_eq_u32 vcc, -1, {vr(vT0)}")
    g("s_cbranch_vccz L_polled")
    g(f"s_add_u32 {sr(sT[4])}, {sr(sT[4])}, 1")
    g(f"s_cmp_ge_u32 {sr(sT[4])}, 0x20000")
    g("s_cbranch_scc1 L_polled")
    g("s_sleep 1")
    g("s_branch L_poll")
    g.label("L_polled")
    stamp_sel(g, 8, sOB)
    rf = [(0, e, vSP + 4 * e) for e in range(8)] + [(1, e, vSP + 32 + 4 * e) for e in range(8)] + [(2, e, vSP + 64 + 4 * e) for e in range(5)]
    def mf(s, e, a):
        acc = vD + 4 * e
        c = "0" if s == 0 else vr(acc, 4)
        g(f"v_mfma_f32_16x16x32_bf16 {vr(acc,4)}, {vr(a,4)}, {vr(Bf[s],4)}, {c}")
    for k in range(8): mf(*rf[k])
    ri = 8
    nissued = 4
    for k in range(len(lf)):
        outstanding = nissued - k - 1
        g(f"s_waitcnt lgkmcnt({outstanding})")
        mf(lf[k][0], lf[k][1], LT[k % 4])
        if ri < len(rf): mf(*rf[ri]); ri += 1
        else: g("s_nop 1")
        if nissued < len(lf):
            ldsread(nissued); nissued += 1
    while ri < len(rf): mf(*rf[ri]); ri += 1
    g(f"v_mov_b32 {vr(vX4)}, {vr(vMn)}")
    vA = vY
    g(f"s_lshl_b32 {sr(sT[0])}, {sr(sW)}, 12")
    g(f"s_add_u32 {sr(sT[0])}, {sr(sT[0])}, {RB}")
    swz_write(g, sT[0], vD, vA)
    g(f"v_lshrrev_b32 {vr(vT1)}, 4, {vr(vLane)}")
    g(f"s_and_b32 {sr(sT[0])}, {sr(sW)}, 1")
    g(f"s_lshl_b32 {sr(sT[0])}, {sr(sT[0])}, 2")
    g(f"v_add_u32 {vr(vT1)}, {sr(sT[0])}, {vr(vT1)}")
    g(f"v_and_b32 {vr(vA+4)}, 3, {vr(vLane)}")
    g(f"v_xor_b32 {vr(vA+4)}, {vr(vA+4)}, {vr(vT1)}")
    g(f"v_lshlrev_b32 {vr(vA+4)}, 5, {vr(vA+4)}")
    g(f"s_lshr_b32 {sr(sT[0])}, {sr(sW)}, 1")
    g(f"s_lshl_b32 {sr(sT[0])}, {sr(sT[0])}, 7")
    g(f"v_xor_b32 {vr(vA+4)}, {sr(sT[0])}, {vr(vA+4)}")
    g(f"v_lshl_add_u32 {vr(vA+4)}, {vr(vT1)}, 9, {vr(vA+4)}")
    g(f"v_and_b32 {vr(vT1)}, 12, {vr(vLane)}")
    g(f"v_add_u32 {vr(vA+4)}, {vr(vT1)}, {vr(vA+4)}")
    g(f"s_mov_b64 exec, {sr(sMask,2)}")
    for e in range(8):
        g(f"ds_write_b128 {vr(vA+(e>>1))}, {vr(vD+4*e,4)} offset:{16*(e&1)}")
    g("s_mov_b64 exec, -1")
    g(f"s_lshl_b32 {sr(sT[0])}, {sr(sOB)}, 12")
    g(f"s_add_u32 {sr(sT[0])}, {sr(sT[0])}, {sr(sMB)}")
    g(f"s_lshl_b32 {sr(sT[1])}, {sr(sW)}, 9")
    g(f"s_add_u32 {sr(sT[0])}, {sr(sT[0])}, {sr(sT[1])}")
    g(f"v_lshlrev_b32 {vr(vA+5)}, 3, {vr(vLane)}")
    g(f"s_mov_b32 {sr(sT[3])}, 0x55555555")
    g(f"s_mov_b32 {sr(sT[4])}, 0x55555555")
    g("s_waitcnt lgkmcnt(0)")
    g("s_barrier")
    U = vD
    for p in range(8):
        g(f"ds_read_b32 {vr(U+2*p)}, {vr(vA+4)} offset:{RB + 4096*p}")
        g(f"ds_read_b32 {vr(U+2*p+1)}, {vr(vA+4)} offset:{RB + 4096*p + 16}")
    g("s_waitcnt lgkmcnt(0)")
    for p in (4, 2, 1):
        for q in range(p):
            for u in range(2):
                g(f"v_add_f32 {vr(U+2*q+u)}, {vr(U+2*q+u)}, {vr(U+2*(q+p)+u)}")
    g(f"v_min_u32 {vr(U)}, -2, {vr(U)}")
    g(f"v_min_u32 {vr(U+1)}, -2, {vr(U+1)}")
    g("s_nop 1")
    g(f"v_mov_b32_dpp {vr(U+2)}, {vr(U)} quad_perm:[1,1,3,3] row_mask:0xf bank_mask:0xf")
    g(f"v_mov_b32_dpp {vr(U+3)}, {vr(U+1)} quad_perm:[1,1,3,3] row_mask:0xf bank_mask:0xf")
    g(f"s_mov_b64 exec, {sr(sT[3],2)}")
    g(f"buffer_store_dwordx4 {vr(U,4)}, {vr(vA+5)}, {sr(sO,4)}, {sr(sT[0])} offen{MST}")
    g("s_mov_b64 exec, -1")
    stamp_sel(g, 10, sOB)
    g(f"s_cmp_eq_u32 {sr(sOB)}, 1")
    g("s_cbranch_scc1 L_hookF2")
    load_qfrag(g)
    g("s_waitcnt lgkmcnt(0)")
    g(f"s_mov_b64 vcc, {sr(sPar,2)}")
    g("s_branch L_qk")
    g.label("L_hookF")
    g(f"s_cmp_lg_u32 {sr(sW)}, 0")
    g("s_cbranch_scc1 L_krest")
    preissue()
    g.label("L_hookF2")
    g(f"s_cmp_lg_u32 {sr(sW)}, 0")
    g("s_cbranch_scc1 L_fin")
    g(f"s_mul_i32 {sr(sT[1])}, {sr(sCB)}, {MBS}")
    g(f"s_add_u32 {sr(sT[1])}, {sr(sT[1])}, {sr(sGB)}")
    g(f"s_lshl_b32 {sr(sT[2])}, {sr(sOB)}, 12")
    g(f"s_add_u32 {sr(sT[1])}, {sr(sT[1])}, {sr(sT[2])}")
    g(f"s_lshl_b32 {sr(sT[2])}, {sr(sKQ)}, 10")
    g(f"s_add_u32 {sr(sT[1])}, {sr(sT[1])}, {sr(sT[2])}")
    g(f"s_add_u32 {sr(sT[2])}, {sr(sT[1])}, {8*MBS}")
    g(f"s_add_u32 {sr(sT[3])}, {sr(sT[1])}, {16*MBS}")
    g(f"s_add_u32 {sr(sT[5])}, {sr(sT[1])}, {24*MBS}")
    g(f"s_lshl_b32 {sr(sT[0])}, {sr(sBP)}, 1")
    g(f"s_add_u32 {sr(sT[0])}, {sr(sT[0])}, {sr(sOB)}")
    g(f"s_lshl_b32 {sr(sT[0])}, {sr(sT[0])}, 14")
    g(f"s_lshl_b32 {sr(sT[6])}, {sr(sCB)}, 8")
    g(f"s_add_u32 {sr(sT[0])}, {sr(sT[0])}, {sr(sT[6])}")
    g(f"s_lshl_b32 {sr(sT[6])}, {sr(sKQ)}, 6")
    g(f"s_add_u32 {sr(sT[0])}, {sr(sT[0])}, {sr(sT[6])}")
    g(f"v_lshrrev_b32 {vr(vAl)}, 3, {vr(vLane)}")
    g(f"v_and_b32 {vr(vT1)}, 7, {vr(vLane)}")
    g(f"v_lshlrev_b32 {vr(vAl)}, 11, {vr(vAl)}")
    g(f"v_lshl_add_u32 {vr(vAl)}, {vr(vT1)}, 3, {vr(vAl)}")
    g(f"s_mov_b32 {sr(sT[4])}, 0")
    g.label("L_fpoll")
    for ks, so in enumerate([sT[1], sT[2], sT[3], sT[5]]):
        g(f"buffer_load_dwordx4 {vr(vY+4*ks,4)}, {vr(vV)}, {sr(sO,4)}, {sr(so)} offen{MLD}")
    g("s_waitcnt vmcnt(0)")
    g(f"v_max3_u32 {vr(vT0)}, {vr(vY)}, {vr(vY+1)}, {vr(vY+2)}")
    g(f"v_max3_u32 {vr(vT1)}, {vr(vY+3)}, {vr(vY+4)}, {vr(vY+5)}")
    for k in range(6, 16, 4):
        g(f"v_max3_u32 {vr(vT0)}, {vr(vT0)}, {vr(vY+k)}, {vr(vY+k+1)}")
        if k + 3 < 16: g(f"v_max3_u32 {vr(vT1)}, {vr(vT1)}, {vr(vY+k+2)}, {vr(vY+k+3)}")
    g(f"v_max_u32 {vr(vT0)}, {vr(vT0)}, {vr(vT1)}")
    g(f"v_cmp_eq_u32 vcc, -1, {vr(vT0)}")
    g("s_cbranch_vccz L_fpolled")
    g(f"s_add_u32 {sr(sT[4])}, {sr(sT[4])}, 1")
    g(f"s_cmp_ge_u32 {sr(sT[4])}, 0x20000")
    g("s_cbranch_scc1 L_fpolled")
    g("s_sleep 1")
    g("s_branch L_fpoll")
    g.label("L_fpolled")
    for c in range(4):
        g(f"v_add_f32 {vr(vY+c)}, {vr(vY+c)}, {vr(vY+4+c)}")
        g(f"v_add_f32 {vr(vY+8+c)}, {vr(vY+8+c)}, {vr(vY+12+c)}")
    for c in range(4):
        g(f"v_add_f32 {vr(vY+c)}, {vr(vY+c)}, {vr(vY+8+c)}")
    g(f"v_cvt_pk_bf16_f32 {vr(vY)}, {vr(vY)}, {vr(vY+1)}")
    g(f"v_cvt_pk_bf16_f32 {vr(vY+1)}, {vr(vY+2)}, {vr(vY+3)}")
    g(f"buffer_store_dwordx2 {vr(vY,2)}, {vr(vAl)}, {sr(sOUT,4)}, {sr(sT[0])} offen")
    g(f"s_cmp_eq_u32 {sr(sOB)}, 1")
    g("s_cbranch_scc1 L_fin")
    stamp(g, 13)
    g(f"s_mov_b64 vcc, {sr(sPar,2)}")
    g("s_nop 1")
    g("s_branch L_qk")
    g.label("L_fin")
    if DBG2:
        g(f"s_cmp_lg_u32 {sr(sW)}, 0")
        g("s_cbranch_scc1 L_end")
        g("s_waitcnt vmcnt(0)")
        g("s_memrealtime s[92:93]")
        g("s_waitcnt lgkmcnt(0)")
        g("s_not_b32 s94, s94")
        g("v_mov_b32 v1, s94")
        g("v_mov_b32 v2, s92")
        g("v_mov_b32 v3, s91")
        g("s_mov_b64 exec, 1")
        g(f"buffer_atomic_umax v1, off, {sr(sDBG,4)}, 0 offset:4 sc1")
        g(f"buffer_atomic_umax v2, off, {sr(sDBG,4)}, 0 offset:8 sc1")
        g(f"buffer_atomic_umax v3, off, {sr(sDBG,4)}, 0 offset:12 sc1")
    if DBG: g("s_waitcnt vmcnt(0)")
    stamp(g, 14)
    stamp_flush(g, 16)
    g.label("L_end")
    g("s_endpgm")

g = G()
g.raw(f"; @launch grid=(256,1,1) block=(512,1,1) lds={LDS}")
g.raw('.amdgcn_target "amdgcn-amd-amdhsa--gfx950"\n.text')
kernel(g)
g.raw('.section .rodata,"a"\n.p2align 6')
g.raw(".amdhsa_kernel standalone__mha_block_cached__sampling_kernel")
g.raw(f"  .amdhsa_next_free_vgpr 256\n  .amdhsa_next_free_sgpr 102\n  .amdhsa_accum_offset 256")
g.raw("  .amdhsa_group_segment_fixed_size 0\n  .amdhsa_kernarg_size 64\n  .amdhsa_user_sgpr_count 2")
g.raw("  .amdhsa_user_sgpr_kernarg_segment_ptr 1\n  .amdhsa_system_sgpr_workgroup_id_x 1")
g.raw("  .amdhsa_float_denorm_mode_32 3\n  .amdhsa_float_denorm_mode_16_64 3")
g.raw(".end_amdhsa_kernel")
open(sys.argv[1], "w").write(g.text())
```

```python
import sys, math, struct, os

def f32bits(x): return struct.unpack("<I", struct.pack("<f", x))[0]
OPT = dict(kv.split("=") for kv in sys.argv[2:])
WA = int(OPT.get("WA", 3))
WB = int(OPT.get("WB", 4))
WQ = int(OPT.get("WQ", 8))
DBG = int(OPT.get("dbg", 0))
OPB = int(OPT.get("opb", 10))
OPF = int(OPT.get("opf", 12))
QTAIL = int(OPT.get("qtail", 8))
PAR = OPT.get("par", "xcc")
NLDS = int(OPT.get("nlds", 11))
NOW = int(OPT.get("now", 0))
def pol(s): return "" if s == "-" else " " + s.replace("+", " ")
MST = pol(OPT.get("mst", "sc1"))
MLD = pol(OPT.get("mld", "sc1"))
CLR = pol(OPT.get("clr", "sc1"))
PRIO = int(OPT.get("prio", 0))
CBX = int(OPT.get("cbx", 0))
DYN = int(OPT.get("dyn", 0))
DTH = int(OPT.get("dth", 0))
NOCLR = int(OPT.get("noclr", 0))
DBG2 = int(OPT.get("dbg2", 0))
HMAP = OPT.get("hmap", "A")
QROT = int(OPT.get("qrot", 0))
WROT = int(OPT.get("wrot", 0))
assert WB >= WA
LV = [int(z) for z in OPT.get("lv", f"{WA},{WB}").split(",")]
LT_ = [int(z) for z in OPT.get("lt", "0").split(",")]
WM = max(LV)
MULTI = "lv" in OPT
sLvl = 31

class G:
    def __init__(self): self.L = []; self.q = []; self.nl = 0
    def __call__(self, s): self.L.append("  " + s)
    def label(self, s): self.L.append(s + ":")
    def raw(self, s): self.L.append(s)
    def text(self): return "\n".join(self.L) + "\n"
    def newlabel(self):
        self.nl += 1; return f"L_t{self.nl}"
    def vm(self, s, tag):
        self(s); self.q.append(tag)
    def wait_idx(self, idx):
        n = len(self.q) - 1 - idx
        assert n >= 0
        self(f"s_waitcnt vmcnt({min(n,63)})")
        if n <= 63: self.q = self.q[idx + 1:]
    def wait_tag(self, tag):
        idx = [i for i, t in enumerate(self.q) if t == tag]
        if idx: self.wait_idx(idx[-1])
    def throttle(self, w, pred=lambda t: True):
        idx = [i for i, t in enumerate(self.q) if pred(t)]
        if len(idx) >= w: self.wait_idx(idx[-w])

def vr(a, n=1): return f"v{a}" if n == 1 else f"v[{a}:{a+n-1}]"
def sr(a, n=1): return f"s{a}" if n == 1 else f"s[{a}:{a+n-1}]"

sK, sV, sWQ, sX, sWO, sO, sOUT, sDBG = 20, 24, 28, 32, 36, 40, 44, 48
sW, sH, sBP, sCB, sCur, sNxt, sSelLo, sSelHi, sC = 52, 53, 54, 55, 56, 57, 58, 59, 60
sT = [61, 62, 63, 64, 65, 66, 67]
sLW, sMB = 68, 69
sMask = 70
sBI, sN, sBase, sRot, sWoB, sOB = 72, 73, 74, 75, 78, 79
sKQ = 3
sSt = 80
sPar = 100
sHS = 28
sGB = 29
vWo = 0
vK, vK2, vV, vV2 = 1, 2, 3, 4
vM_, vL, vAl, vT0, vT1, vMn, vLane = 5, 6, 7, 8, 9, 10, 11
vP = 12; vY = 16; vVt = 24; vQ = 32; vO = 40; vD = 72; vKB = 104; vVB = 136; vSP = 168
vK1 = 168; vV1 = 200
vX4 = 252
QP = 0
CB = 0; RB = 32768
LW = 65536; LWS = 11264
QF = LW + 8 * LWS; QFS = 272
ML = QF + 16 * QFS
TS = ML + 512
LDS = TS + 64
assert LDS <= 163840
MBS = 12416
HDR = 12288
sTH = 30
SCALE = (128 ** -0.5) * math.log2(math.e)

def stamp(g, i):
    if not DBG: return
    g("s_memrealtime s[76:77]")
    g("s_waitcnt lgkmcnt(0)")
    g(f"s_mov_b32 {sr(sSt+i)}, s76")
def stamp_sel(g, i, s):
    if not DBG: return
    g("s_memrealtime s[76:77]")
    g("s_waitcnt lgkmcnt(0)")
    g(f"s_cmp_eq_u32 {sr(s)}, 0")
    g(f"s_cselect_b32 {sr(sSt+i)}, s76, {sr(sSt+i)}")
    g(f"s_cselect_b32 {sr(sSt+i+1)}, {sr(sSt+i+1)}, s76")
def stamp_flush(g, n):
    if not DBG: return
    g("s_mov_b32 s96, s18"); g("s_mov_b32 s97, s19"); g("s_mov_b32 s98, 0x2000000"); g("s_mov_b32 s99, 0x00020000")
    g("s_lshl_b32 s76, s2, 3"); g(f"s_add_u32 s76, s76, {sr(sW)}"); g("s_lshl_b32 s76, s76, 6"); g("s_add_u32 s76, s76, 0x1000000")
    g("s_mov_b64 exec, 1")
    for i in range(n):
        g(f"v_mov_b32 v1, {sr(sSt+i)}")
        g(f"buffer_store_dword v1, off, s[96:99], s76 offset:{4*i}")
    g("s_mov_b64 exec, -1")

def srd(g, d, p, size):
    g(f"s_mov_b32 {sr(d)}, {sr(p)}")
    g(f"s_mov_b32 {sr(d+1)}, {sr(p+1)}")
    g(f"s_mov_b32 {sr(d+2)}, {size:#x}")
    g(f"s_mov_b32 {sr(d+3)}, 0x00020000")

def koffs(i):
    G_, j = i >> 1, i & 1
    return (vK2 if G_ >= 2 else vK), (G_ & 1) * 2048 + 128 * j
def voffs(i):
    return (vV2 if i >= 4 else vV), 1024 * (i % 4)
def kload(buf, i, so):
    a, o = koffs(i)
    return f"buffer_load_dwordx4 {vr(buf+4*i,4)}, {vr(a)}, {sr(sK,4)}, {sr(so)} offen offset:{o} nt"
def vload(buf, i, so):
    a, o = voffs(i)
    return f"buffer_load_dwordx4 {vr(buf+4*i,4)}, {vr(a)}, {sr(sV,4)}, {sr(so)} offen offset:{o} nt"

def advance(g):
    g(f"s_mov_b32 {sr(sCur)}, {sr(sNxt)}")
    g(f"s_add_u32 {sr(sN)}, {sr(sN)}, 1")
    g(f"s_add_u32 {sr(sRot)}, {sr(sRot)}, 0x10000")
    g(f"s_and_b32 {sr(sRot)}, {sr(sRot)}, 0x70000")
    g(f"s_cmp_eq_u32 {sr(sN)}, 7")
    g(f"s_cselect_b32 {sr(sT[0])}, 0x1000000, 0")
    g(f"s_add_u32 {sr(sBase)}, {sr(sBase)}, {sr(sT[0])}")
    g(f"s_add_u32 {sr(sNxt)}, {sr(sBase)}, {sr(sRot)}")

def perm4(g, dst, rows, e):
    sel = sSelHi if (e & 1) else sSelLo
    for t in range(4):
        g(f"v_perm_b32 {vr(dst+t)}, {vr(rows[2*t+1] + (e>>1))}, {vr(rows[2*t] + (e>>1))}, {sr(sel)}")

def perm_mfma(g, rows, accbase, bfrag, first, es=range(8)):
    es = list(es)
    perm4(g, vVt + 4 * (es[0] & 1), rows, es[0])
    for n, e in enumerate(es):
        if n + 1 < len(es): perm4(g, vVt + 4 * (es[n+1] & 1), rows, es[n + 1])
        else: g("s_nop 1")
        T = vVt + 4 * (e & 1)
        a = accbase + 4 * e
        c = "0" if first else vr(a, 4)
        g(f"v_mfma_f32_16x16x32_bf16 {vr(a,4)}, {vr(T,4)}, {vr(bfrag,4)}, {c}")

def xlane(g, x, t, op):
    g(f"v_mov_b32 {vr(t)}, {vr(x)}")
    g("s_nop 1")
    g(f"v_permlane16_swap_b32 {vr(t)}, {vr(x)}")
    g(f"{op} {vr(x)}, {vr(x)}, {vr(t)}")
    g(f"v_mov_b32 {vr(t)}, {vr(x)}")
    g("s_nop 1")
    g(f"v_permlane32_swap_b32 {vr(t)}, {vr(x)}")
    g(f"{op} {vr(x)}, {vr(x)}, {vr(t)}")

def qk(g, KB):
    def M(D, G_):
        for j in range(2):
            c = "0" if j == 0 else vr(D, 16)
            g(f"v_mfma_f32_32x32x16_bf16 {vr(D,16)}, {vr(KB + 4*(2*G_+j), 4)}, {vr(vQ + 4*j, 4)}, {c}")
    def red(D, G_):
        for i in range(4):
            g(f"v_add_f32_dpp {vr(D+4*i)}, {vr(D+4*i+1)}, {vr(D+4*i)} row_ror:8 row_mask:0x5 bank_mask:0xf")
            g(f"v_add_f32_dpp {vr(D+4*i)}, {vr(D+4*i+3)}, {vr(D+4*i+2)} row_ror:8 row_mask:0xa bank_mask:0xf")
        g("s_nop 1")
        g(f"v_permlane16_swap_b32 {vr(D)}, {vr(D+4)}")
        g(f"v_permlane16_swap_b32 {vr(D+8)}, {vr(D+12)}")
        g(f"v_add_f32 {vr(vY+2*G_)}, {vr(D)}, {vr(D+4)}")
        g(f"v_add_f32 {vr(vY+2*G_+1)}, {vr(D+8)}, {vr(D+12)}")
    D0, D1 = vD, vD + 16
    M(D0, 0); M(D1, 1)
    g("s_nop 9")
    red(D0, 0); M(D0, 2); red(D1, 1); M(D1, 3); red(D0, 2); red(D1, 3)

def sm1(g):
    Y = vY
    g(f"v_max3_f32 {vr(vT0)}, {vr(Y)}, {vr(Y+1)}, {vr(Y+2)}")
    g(f"v_max3_f32 {vr(vT1)}, {vr(Y+3)}, {vr(Y+4)}, {vr(Y+5)}")
    g(f"v_max3_f32 {vr(vT0)}, {vr(vT0)}, {vr(Y+6)}, {vr(Y+7)}")
    g(f"v_max_f32 {vr(vT0)}, {vr(vT0)}, {vr(vT1)}")
    xlane(g, vT0, vT1, "v_max_f32")
    g(f"v_mul_f32 {vr(vT0)}, {sr(sC)}, {vr(vT0)}")
    g(f"v_max_f32 {vr(vMn)}, {vr(vM_)}, {vr(vT0)}")
    g(f"v_sub_f32 {vr(vT1)}, {vr(vM_)}, {vr(vMn)}")
    g(f"v_exp_f32 {vr(vAl)}, {vr(vT1)}")
    g(f"v_mov_b32 {vr(vM_)}, {vr(vMn)}")
    for i in range(8):
        g(f"v_fma_f32 {vr(Y+i)}, {vr(Y+i)}, {sr(sC)}, -{vr(vMn)}")
    for i in range(8):
        g(f"v_exp_f32 {vr(Y+i)}, {vr(Y+i)}")
    g(f"v_mul_f32 {vr(vL)}, {vr(vL)}, {vr(vAl)}")
    for u in range(4):
        g(f"v_cvt_pk_bf16_f32 {vr(vP+u)}, {vr(Y+2*u)}, {vr(Y+2*u+1)}")
    g(f"v_add_f32 {vr(vT0)}, {vr(Y)}, {vr(Y+1)}")
    g(f"v_add_f32 {vr(vT1)}, {vr(Y+2)}, {vr(Y+3)}")
    g(f"v_add_f32 {vr(Y+4)}, {vr(Y+4)}, {vr(Y+5)}")
    g(f"v_add_f32 {vr(Y+6)}, {vr(Y+6)}, {vr(Y+7)}")
    g(f"v_add_f32 {vr(vT0)}, {vr(vT0)}, {vr(vT1)}")
    g(f"v_add_f32 {vr(Y+4)}, {vr(Y+4)}, {vr(Y+6)}")
    g(f"v_add_f32 {vr(vL)}, {vr(vL)}, {vr(vT0)}")
    g(f"v_add_f32 {vr(vL)}, {vr(vL)}, {vr(Y+4)}")
def sm2(g):
    for i in range(32):
        g(f"v_mul_f32 {vr(vO+i)}, {vr(vO+i)}, {vr(vAl)}")
def pv(g, VB, es=range(8)):
    perm_mfma(g, [VB + 4 * i for i in range(8)], vO, vP, False, es)

def load_qfrag(g):
    g(f"v_and_b32 {vr(vT0)}, 7, {vr(vLane)}")
    g(f"v_lshrrev_b32 {vr(vT1)}, 3, {vr(vLane)}")
    g(f"v_mul_u32_u24 {vr(vT0)}, {QFS}, {vr(vT0)}")
    g(f"v_lshl_add_u32 {vr(vT0)}, {vr(vT1)}, 4, {vr(vT0)}")
    g(f"s_mul_i32 {sr(sT[0])}, {sr(sBI)}, {8*QFS}")
    g(f"s_add_u32 {sr(sT[0])}, {sr(sT[0])}, {QF}")
    g(f"v_add_u32 {vr(vT0)}, {sr(sT[0])}, {vr(vT0)}")
    for j in range(2):
        g(f"ds_read_b128 {vr(vQ+4*j,4)}, {vr(vT0)} offset:{128*j}")
def reset_state(g):
    g(f"v_mov_b32 {vr(vM_)}, 0xff7fffff")
    g(f"v_mov_b32 {vr(vL)}, 0")
    for i in range(32):
        g(f"v_mov_b32 {vr(vO+i)}, 0")

def dwait(g, ca, cb):
    if ca == cb or PAR == "none":
        g(f"s_waitcnt vmcnt({ca})"); return
    l = g.newlabel()
    g(f"s_cbranch_vccnz {l}")
    g(f"s_waitcnt vmcnt({ca})")
    g.label(l)
    g(f"s_waitcnt vmcnt({cb})")

def mwait(g):
    if not MULTI:
        dwait(g, WA - 1, WB - 1); return
    ls = [g.newlabel() for _ in LV]
    for k in range(len(LV) - 1, 0, -1):
        g(f"s_cmp_ge_u32 {sr(sLvl)}, {k}")
        g(f"s_cbranch_scc1 {ls[k]}")
    for k in range(len(LV)):
        if k: g.label(ls[k])
        g(f"s_waitcnt vmcnt({LV[k]-1})")

def swz_write(g, base_s, src, A):
    g(f"v_and_b32 {vr(vT0)}, 15, {vr(vLane)}")
    g(f"v_lshrrev_b32 {vr(vT1)}, 4, {vr(vLane)}")
    g(f"v_lshlrev_b32 {vr(vT1)}, 7, {vr(vT1)}")
    g(f"v_lshlrev_b32 {vr(A)}, 5, {vr(vT0)}")
    g(f"v_xor_b32 {vr(vT1)}, {vr(vT1)}, {vr(A)}")
    g(f"v_lshl_add_u32 {vr(A)}, {vr(vT0)}, 9, {vr(vT1)}")
    g(f"v_add_u32 {vr(A)}, {sr(base_s)}, {vr(A)}")
    for k in range(1, 4):
        g(f"v_xor_b32 {vr(A+k)}, {32*k}, {vr(A)}")

def kernel(g):
    NAME = "standalone__mha_block_cached__sampling_kernel"
    g.raw(f".globl {NAME}\n.p2align 8\n.type {NAME},@function")
    g.label(NAME)
    g("s_cmp_ge_u32 s2, 256")
    g("s_cbranch_scc1 L_end")
    g("s_load_dwordx16 s[4:19], s[0:1], 0")
    g(f"v_lshrrev_b32 {vr(vT0)}, 6, v0")
    g(f"v_and_b32 {vr(vLane)}, 63, v0")
    g(f"v_readfirstlane_b32 {sr(sW)}, {vr(vT0)}")
    if HMAP == "A":
        g(f"s_and_b32 {sr(sH)}, s2, 31")
    elif HMAP == "B":
        g(f"s_and_b32 {sr(sT[0])}, s2, 7")
        g(f"s_bfe_u32 {sr(sT[1])}, s2, 0x20003")
        g(f"s_lshl_b32 {sr(sH)}, {sr(sT[0])}, 2")
        g(f"s_or_b32 {sr(sH)}, {sr(sH)}, {sr(sT[1])}")
    else:
        g(f"s_and_b32 {sr(sH)}, s2, 1")
        g(f"s_bfe_u32 {sr(sT[1])}, s2, 0x20003")
        g(f"s_lshl_b32 {sr(sT[1])}, {sr(sT[1])}, 1")
        g(f"s_or_b32 {sr(sH)}, {sr(sH)}, {sr(sT[1])}")
        g(f"s_bfe_u32 {sr(sT[1])}, s2, 0x20001")
        g(f"s_lshl_b32 {sr(sT[1])}, {sr(sT[1])}, 3")
        g(f"s_or_b32 {sr(sH)}, {sr(sH)}, {sr(sT[1])}")
    g(f"s_and_b32 {sr(sCB)}, {sr(sH)}, 7")
    if CBX: g(f"s_xor_b32 {sr(sCB)}, {sr(sCB)}, {CBX}")
    g(f"s_lshr_b32 {sr(sKQ)}, {sr(sH)}, 3")
    g(f"s_lshr_b32 {sr(sBP)}, s2, 5")
    g(f"s_mov_b32 {sr(sSelLo)}, 0x05040100")
    g(f"s_mov_b32 {sr(sSelHi)}, 0x07060302")
    m, gg = vT0, vT1
    g(f"v_and_b32 {vr(m)}, 15, {vr(vLane)}")
    g(f"v_lshrrev_b32 {vr(gg)}, 4, {vr(vLane)}")
    g(f"v_bfe_u32 {vr(vK)}, {vr(vLane)}, 4, 1")
    g(f"v_lshlrev_b32 {vr(vK)}, 10, {vr(vK)}")
    g(f"v_bfe_u32 {vr(vK2)}, {vr(vLane)}, 2, 1")
    g(f"v_lshl_add_u32 {vr(vK)}, {vr(vK2)}, 9, {vr(vK)}")
    g(f"v_bfe_u32 {vr(vK2)}, {vr(vLane)}, 3, 1")
    g(f"v_lshl_add_u32 {vr(vK)}, {vr(vK2)}, 8, {vr(vK)}")
    g(f"v_lshrrev_b32 {vr(vK2)}, 5, {vr(vLane)}")
    g(f"v_lshl_add_u32 {vr(vK)}, {vr(vK2)}, 6, {vr(vK)}")
    g(f"v_and_b32 {vr(vK2)}, 3, {vr(vLane)}")
    g(f"v_lshl_add_u32 {vr(vK)}, {vr(vK2)}, 4, {vr(vK)}")
    g(f"v_add_u32 {vr(vK2)}, 0x1000, {vr(vK)}")
    g(f"v_lshlrev_b32 {vr(vV)}, 4, {vr(vLane)}")
    g(f"v_add_u32 {vr(vV2)}, 0x1000, {vr(vV)}")
    vWq, vX = vM_, vL
    g(f"v_lshlrev_b32 {vr(vWq)}, 16, {vr(gg)}")
    g(f"v_lshl_add_u32 {vr(vWq)}, {vr(m)}, 4, {vr(vWq)}")
    g(f"v_lshlrev_b32 {vr(vX)}, 11, {vr(m)}")
    g(f"v_lshl_add_u32 {vr(vX)}, {vr(gg)}, 4, {vr(vX)}")
    g(f"v_lshlrev_b32 {vr(vWo)}, 12, {vr(gg)}")
    g(f"v_lshl_add_u32 {vr(vWo)}, {vr(m)}, 4, {vr(vWo)}")
    for i in range(4): g(f"v_mov_b32 {vr(vO+i)}, -1")
    sXo, sWqB, sO0 = sT[4], sT[5], sT[6]
    g(f"s_lshl_b32 {sr(sXo)}, {sr(sBP)}, 15")
    g(f"s_lshl_b32 {sr(sT[1])}, {sr(sW)}, 8")
    g(f"s_add_u32 {sr(sXo)}, {sr(sXo)}, {sr(sT[1])}")
    g(f"s_lshl_b32 {sr(sT[1])}, {sr(sW)}, 20")
    g(f"s_lshl_b32 {sr(sT[2])}, {sr(sH)}, 8")
    g(f"s_add_u32 {sr(sWqB)}, {sr(sT[1])}, {sr(sT[2])}")
    g(f"s_lshl_b32 {sr(sT[1])}, {sr(sKQ)}, 3")
    g(f"s_add_u32 {sr(sT[1])}, {sr(sT[1])}, {sr(sW)}")
    g(f"s_lshl_b32 {sr(sT[1])}, {sr(sT[1])}, 18")
    g(f"s_lshl_b32 {sr(sT[2])}, {sr(sCB)}, 8")
    g(f"s_add_u32 {sr(sWoB)}, {sr(sT[1])}, {sr(sT[2])}")
    g(f"s_mul_i32 {sr(sLW)}, {sr(sW)}, {LWS}")
    g(f"s_add_u32 {sr(sLW)}, {sr(sLW)}, {LW}")
    g(f"s_lshl_b32 {sr(sT[2])}, {sr(sBP)}, 5")
    g(f"s_add_u32 {sr(sT[2])}, {sr(sT[2])}, {sr(sH)}")
    g(f"s_mul_i32 {sr(sMB)}, {sr(sT[2])}, {MBS}")
    g(f"s_lshl_b32 {sr(sT[2])}, {sr(sBP)}, 6")
    g(f"s_add_u32 {sr(sT[2])}, {sr(sT[2])}, {sr(sH)}")
    g(f"s_lshl_b32 {sr(sBase)}, {sr(sT[2])}, 19")
    g(f"s_lshl_b32 {sr(sT[2])}, {sr(sW)}, 13")
    g(f"s_add_u32 {sr(sBase)}, {sr(sBase)}, {sr(sT[2])}")
    g(f"s_lshl_b32 {sr(sRot)}, {sr(sBP)}, 16")
    g(f"s_add_u32 {sr(sNxt)}, {sr(sBase)}, {sr(sRot)}")
    g(f"s_mov_b32 {sr(sN)}, -1")
    advance(g)
    g(f"s_mov_b32 {sr(sO0)}, {sr(sCur)}")
    advance(g)
    g(f"s_mov_b32 {sr(sC)}, {f32bits(SCALE):#x}")
    g(f"s_mov_b32 {sr(sMask)}, 0x00ff00ff")
    g(f"s_mov_b32 {sr(sMask+1)}, 0x00ff00ff")
    g(f"s_mov_b32 {sr(sBI)}, 0")
    if PAR == "xcc":
        g(f"s_getreg_b32 {sr(sPar)}, hwreg(HW_REG_XCC_ID, 0, 1)")
    elif PAR == "slow":
        g(f"s_and_b32 {sr(sPar)}, {sr(sH)}, 3")
        g(f"s_cmp_eq_u32 {sr(sPar)}, 1")
        g(f"s_cselect_b32 {sr(sPar)}, 1, 0")
    elif PAR == "slow2":
        g(f"s_and_b32 {sr(sPar)}, {sr(sH)}, 1")
    elif PAR == "x157":
        g(f"s_getreg_b32 {sr(sPar)}, hwreg(HW_REG_XCC_ID, 0, 3)")
        g(f"s_lshr_b32 {sr(sPar)}, 0xa2, {sr(sPar)}")
        g(f"s_and_b32 {sr(sPar)}, {sr(sPar)}, 1")
    elif PAR == "wg":
        g(f"s_and_b32 {sr(sPar)}, s2, 1")
    else:
        g(f"s_mov_b32 {sr(sPar)}, 0")
    g(f"s_mov_b32 {sr(sPar+1)}, 0")
    g(f"s_mov_b64 vcc, {sr(sPar,2)}")
    if PRIO:
        g(f"s_cmp_lt_u32 {sr(sW)}, 4")
        g("s_cbranch_scc1 L_noprio")
        g(f"s_setprio {PRIO}")
        g.label("L_noprio")
    if DBG2: g("s_memrealtime s[94:95]")
    g("s_waitcnt lgkmcnt(0)")
    stamp(g, 0)
    srd(g, sX, 4, 262144)
    srd(g, sWQ, 10, 8388608)
    srd(g, sK, 6, 0x10000000)
    srd(g, sV, 8, 0x10000000)
    srd(g, sO, 18, 256 * MBS)
    stgA = [vD + 4 * i for i in range(8)]
    stgB = [232 + 4 * i for i in range(6)] + [vY, vY + 4]
    stg = [stgA, stgB]
    sQS = sOB
    def xload(s):
        if QROT:
            g(f"s_add_u32 {sr(sT[3])}, {sr(sBP)}, {s}")
            g(f"s_and_b32 {sr(sT[3])}, {sr(sT[3])}, 3")
            g(f"s_lshl_b32 {sr(sT[3])}, {sr(sT[3])}, 6")
            g(f"s_add_u32 {sr(sT[3])}, {sr(sT[3])}, {sr(sXo)}")
            g.vm(f"buffer_load_dwordx4 {vr(vQ+4*(s&1),4)}, {vr(vX)}, {sr(sX,4)}, {sr(sT[3])} offen", f"x{s}")
        else:
            g.vm(f"buffer_load_dwordx4 {vr(vQ+4*(s&1),4)}, {vr(vX)}, {sr(sX,4)}, {sr(sXo)} offen offset:{64*s}", f"x{s}")
    def wqload(s, i):
        if QROT:
            if i == 0:
                g(f"s_add_u32 {sr(sQS)}, {sr(sBP)}, {s}")
                g(f"s_and_b32 {sr(sQS)}, {sr(sQS)}, 3")
                g(f"s_lshl_b32 {sr(sQS)}, {sr(sQS)}, 18")
                g(f"s_add_u32 {sr(sQS)}, {sr(sQS)}, {sr(sWqB)}")
            g(f"s_add_u32 {sr(sT[3])}, {sr(sQS)}, {i*8192:#x}")
        else:
            g(f"s_add_u32 {sr(sT[3])}, {sr(sWqB)}, {(32*s+i)*8192:#x}")
        g.vm(f"buffer_load_dwordx4 {vr(stg[s&1][i],4)}, {vr(vWq)}, {sr(sWQ,4)}, {sr(sT[3])} offen nt", f"wq{s}")
    kv = [(None, kload(vKB, i, sO0), "K0") for i in range(8)] + [(None, vload(vVB, i, sO0), "V0") for i in range(8)] + \
         [(None, kload(vK1, i, sCur), "K1") for i in range(8)] + [(None, vload(vV1, i, sCur), "V1") for i in range(8)]
    for i in range(8):
        a, o = koffs(i)
        kv.append((1024 * i - o, f"buffer_load_dwordx4 {vr(a)}, {sr(sK,4)}, {sr(sNxt)} offen offset:{o} nt lds", "K2L"))
    for i in range(NLDS - 8):
        a, o = voffs(i)
        kv.append((8192 + 1024 * i - o, f"buffer_load_dwordx4 {vr(a)}, {sr(sV,4)}, {sr(sNxt)} offen offset:{o} nt lds", "V2L"))
    NKV = len(kv)
    def kvissue(k, thr=True):
        mo, s, tag = kv[k]
        if mo is not None:
            if mo >= 0: g(f"s_add_u32 m0, {sr(sLW)}, {mo}")
            else: g(f"s_sub_u32 m0, {sr(sLW)}, {-mo}")
        if thr: g.throttle(WQ)
        if mo is not None: g("s_nop 0")
        g.vm(s, tag)
    def qcomp(s):
        g.wait_tag(f"wq{s}"); g.wait_tag(f"x{s}")
        perm_mfma(g, stg[s & 1], vO, vQ + 4 * (s & 1), s == 0)
    xload(0); xload(1)
    kvi = 0
    NKV_IN = NKV - QTAIL
    for idx in range(32):
        s, i = idx // 8, idx % 8
        if i == 0 and s >= 2:
            qcomp(s - 2)
            xload(s)
        g.throttle(WQ)
        wqload(s, i)
        while kvi < (idx + 1) * NKV_IN // 32:
            kvissue(kvi); kvi += 1
        if idx == 3 and not NOCLR:
            g(f"s_lshl_b32 {sr(sT[1])}, {sr(sW)}, 10")
            g(f"s_add_u32 {sr(sT[1])}, {sr(sT[1])}, {sr(sMB)}")
            g.vm(f"buffer_store_dwordx4 {vr(vO,4)}, {vr(vV)}, {sr(sO,4)}, {sr(sT[1])} offen{CLR}", "clr")
            g(f"s_lshl_b32 {sr(sT[1])}, {sr(sW)}, 9")
            g(f"s_add_u32 {sr(sT[1])}, {sr(sT[1])}, {sr(sMB)}")
            g(f"s_add_u32 {sr(sT[1])}, {sr(sT[1])}, 8192")
            g("s_mov_b32 exec_hi, 0")
            g.vm(f"buffer_store_dwordx4 {vr(vO,4)}, {vr(vV)}, {sr(sO,4)}, {sr(sT[1])} offen{CLR}", "clr")
            if DYN:
                g("s_mov_b32 exec_lo, 1")
                g(f"s_add_u32 {sr(sT[1])}, {sr(sMB)}, {HDR}")
                g(f"s_lshl_b32 {sr(sT[2])}, {sr(sW)}, 4")
                g(f"s_add_u32 {sr(sT[1])}, {sr(sT[1])}, {sr(sT[2])}")
                g.vm(f"buffer_store_dwordx4 {vr(vO,4)}, off, {sr(sO,4)}, {sr(sT[1])}{CLR}", "clr")
                g("s_mov_b32 exec_lo, -1")
            g("s_mov_b32 exec_hi, -1")
        if idx == 3:
            srd(g, sWO, 12, 8388608)
            srd(g, sOUT, 14, 262144)
            srd(g, sDBG, 16, 256)
    qcomp(2)
    half = kvi + (NKV - kvi) // 2
    while kvi < half:
        kvissue(kvi); kvi += 1
    qcomp(3)
    while kvi < NKV:
        kvissue(kvi, False); kvi += 1
    stamp(g, 1)
    if PRIO: g("s_setprio 0")
    vA = vY
    g(f"s_lshl_b32 {sr(sT[0])}, {sr(sW)}, 13")
    g(f"v_add_u32 {vr(vA)}, {sr(sT[0])}, {vr(vV)}")
    g("s_nop 7")
    for e in range(8):
        g(f"ds_write_b128 {vr(vA)}, {vr(vO+4*e,4)} offset:{QP + 1024*e}")
    g(f"s_lshl_b32 {sr(sT[0])}, {sr(sW)}, 10")
    g(f"v_add_u32 {vr(vA)}, {sr(sT[0])}, {vr(vV)}")
    g("s_waitcnt lgkmcnt(0)")
    g("s_barrier")
    for p in range(8):
        g(f"ds_read_b128 {vr(vO+4*p,4)}, {vr(vA)} offset:{QP + 8192*p}")
    g(f"v_and_b32 {vr(vT0)}, 15, {vr(vLane)}")
    g(f"v_lshrrev_b32 {vr(vT1)}, 4, {vr(vLane)}")
    g(f"v_mul_u32_u24 {vr(vA+1)}, {QFS}, {vr(vT0)}")
    g(f"v_lshl_add_u32 {vr(vA+1)}, {vr(vT1)}, 6, {vr(vA+1)}")
    g(f"s_lshl_b32 {sr(sT[0])}, {sr(sW)}, 1")
    g(f"s_add_u32 {sr(sT[0])}, {sr(sT[0])}, {QF}")
    g(f"v_add_u32 {vr(vA+1)}, {sr(sT[0])}, {vr(vA+1)}")
    g("s_waitcnt lgkmcnt(0)")
    for p in (4, 2, 1):
        for q in range(p):
            for r in range(4):
                g(f"v_add_f32 {vr(vO+4*q+r)}, {vr(vO+4*q+r)}, {vr(vO+4*(q+p)+r)}")
    g(f"v_cvt_pk_bf16_f32 {vr(vO+4)}, {vr(vO)}, {vr(vO+1)}")
    g(f"v_cvt_pk_bf16_f32 {vr(vO+5)}, {vr(vO+2)}, {vr(vO+3)}")
    g(f"ds_write_b16 {vr(vA+1)}, {vr(vO+4)} offset:0")
    g(f"ds_write_b16_d16_hi {vr(vA+1)}, {vr(vO+4)} offset:16")
    g(f"ds_write_b16 {vr(vA+1)}, {vr(vO+5)} offset:32")
    g(f"ds_write_b16_d16_hi {vr(vA+1)}, {vr(vO+5)} offset:48")
    g("s_waitcnt lgkmcnt(0)")
    g("s_barrier")
    load_qfrag(g)
    reset_state(g)
    advance(g)
    g(f"s_mul_i32 {sr(sGB)}, {sr(sBP)}, {32*MBS}")
    if MULTI:
        g(f"s_cmp_eq_u32 {sr(sPar)}, 0")
        g(f"s_cselect_b32 {sr(sLvl)}, {LV.index(WA)}, {LV.index(WB)}")
    g(f"v_add_u32 {vr(vX4)}, {sr(sLW)}, {vr(vV)}")
    g("s_waitcnt lgkmcnt(0)")
    stamp(g, 2)
    g.wait_tag("K0"); qk(g, vKB)
    for i in range(3): g.vm(kload(vKB, i, sNxt), "K3")
    g(f"s_cmp_lg_u32 {sr(sW)}, 7")
    g("s_cbranch_scc1 L_nosig")
    g(f"s_lshl_b32 {sr(sT[2])}, {sr(sBP)}, 5")
    g(f"v_mov_b32 {vr(vT0)}, 1")
    g("s_mov_b64 exec, 1")
    g(f"buffer_atomic_add {vr(vT0)}, off, {sr(sDBG,4)}, {sr(sT[2])} sc1")
    g("s_mov_b64 exec, -1")
    g.label("L_nosig")
    sm1(g); sm2(g)
    g.wait_tag("V0"); pv(g, vVB)
    NV = NLDS - 8
    for i in range(NV, 8): g.vm(vload(vVB, i, sCur), "V2")
    g.wait_tag("K1"); qk(g, vK1)
    g.wait_tag("V2L"); g.wait_tag("K2L")
    for i in range(8):
        g(f"ds_read_b128 {vr(vK1+4*i,4)}, {vr(vX4)} offset:{1024*i}")
    for i in range(NV):
        g(f"ds_read_b128 {vr(vVB+4*i,4)}, {vr(vX4)} offset:{8192+1024*i}")
    for i in range(3, 6): g.vm(kload(vKB, i, sNxt), "K3")
    sm1(g); sm2(g)
    pv(g, vV1)
    for i in range(6, 8): g.vm(kload(vKB, i, sNxt), "K3")
    g("s_waitcnt lgkmcnt(0)")
    qk(g, vK1)
    sm1(g); sm2(g)
    g.wait_tag("V2"); pv(g, vVB)
    stamp(g, 3)
    def cnt(full, pos, Wn):
        c = 0; k = 0; p = pos - 1
        while True:
            if full[p] == "K":
                k += 1
                if k == Wn: return c
            c += 1; p -= 1
    g.label("L_xtop")
    advance(g)
    sWS = sOB
    if WROT: g(f"s_add_u32 {sr(sWS)}, {sr(sN)}, {sr(sBP)}")
    else: g(f"s_mov_b32 {sr(sWS)}, {sr(sN)}")
    g(f"s_add_u32 {sr(sWS)}, {sr(sWS)}, 1")
    g(f"s_and_b32 {sr(sWS)}, {sr(sWS)}, 3")
    g(f"s_lshl_b32 {sr(sWS)}, {sr(sWS)}, 16")
    g(f"s_add_u32 {sr(sWS)}, {sr(sWS)}, {sr(sWoB)}")
    seq = ["K"] * 8
    for i in range(8):
        dwait(g, cnt(seq, len(seq), WA), cnt(seq, len(seq), WB))
        g(vload(vVB, i, sCur)); seq.append("K")
        if not NOW:
            g(f"s_add_u32 m0, {sr(sLW)}, {1024*i}")
            g(f"s_add_u32 {sr(sT[3])}, {sr(sWS)}, {(8*(i&3) + (i>>2))*2048:#x}")
            g(f"buffer_load_dwordx4 {vr(vWo)}, {sr(sWO,4)}, {sr(sT[3])} offen nt lds"); seq.append("X")
        if i == WB - 1: qk(g, vKB)
        if i == WB: sm1(g)
        if i == WB + 1: sm2(g)
    for i in range(8):
        dwait(g, cnt(seq, len(seq), WA), cnt(seq, len(seq), WB))
        g(kload(vKB, i, sNxt)); seq.append("K")
        if i == WB - 1: pv(g, vVB)
    for i in range(8):
        g(f"ds_read_b128 {vr(vD+4*i,4)}, {vr(vX4)} offset:{1024*i}")
    rows = [vD + 4 * i for i in range(8)]
    g(f"s_cmp_eq_u32 {sr(sN)}, 4")
    g("s_cbranch_scc1 L_s1")
    g(f"s_cmp_eq_u32 {sr(sN)}, 5")
    g("s_cbranch_scc1 L_s2")
    g(f"s_cmp_eq_u32 {sr(sN)}, 6")
    g("s_cbranch_scc1 L_s3")
    g("s_waitcnt lgkmcnt(0)")
    for e in range(8): perm4(g, vSP + 4 * e, rows, e)
    g("s_branch L_xtop")
    g.label("L_s1")
    g("s_waitcnt lgkmcnt(0)")
    for e in range(8): perm4(g, vSP + 32 + 4 * e, rows, e)
    g("s_branch L_xtop")
    g.label("L_s2")
    g("s_waitcnt lgkmcnt(0)")
    for e in range(5): perm4(g, vSP + 64 + 4 * e, rows, e)
    for e in range(5, 8): perm4(g, vY + 4 * (e - 5), rows, e)
    for e in range(5, 8): g(f"ds_write_b128 {vr(vX4)}, {vr(vY+4*(e-5),4)} offset:{8192+1024*(e-5)}")
    g("s_waitcnt lgkmcnt(0)")
    g("s_branch L_xtop")
    g.label("L_s3")
    g("s_waitcnt lgkmcnt(0)")
    for hf in range(2):
        for e in range(4): perm4(g, vY + 4 * e, rows, 4 * hf + e)
        for e in range(4): g(f"ds_write_b128 {vr(vX4)}, {vr(vY+4*e,4)} offset:{1024*(4*hf+e)}")
        g("s_waitcnt lgkmcnt(0)")
    stamp(g, 12)
    g.label("L_top")
    advance(g)
    for i in range(8):
        mwait(g)
        g(vload(vVB, i, sCur))
        if i == WM - 1:
            g.label("L_qk")
            qk(g, vKB)
        if i == WM: sm1(g)
        if i == WM + 1: sm2(g)
    g(f"s_cmp_eq_u32 {sr(sN)}, 15")
    g("s_cbranch_scc1 L_last")
    for i in range(WM):
        mwait(g)
        g(kload(vKB, i, sNxt))
    g.label("L_pv")
    pv(g, vVB)
    g(f"s_and_b32 {sr(sT[0])}, {sr(sN)}, 7")
    g(f"s_cmp_eq_u32 {sr(sT[0])}, 7")
    g("s_cbranch_scc1 L_hookC")
    g(f"s_cmp_eq_u32 {sr(sN)}, {OPB}")
    g("s_cbranch_scc1 L_hookO")
    g(f"s_cmp_eq_u32 {sr(sN)}, {OPF}")
    g("s_cbranch_scc1 L_hookF")
    g.label("L_krest")
    for i in range(WM, 8):
        mwait(g)
        g(kload(vKB, i, sNxt))
    g("s_branch L_top")
    g.label("L_last")
    g("s_waitcnt vmcnt(0)")
    g("s_branch L_pv")
    def preissue():
        for i in range(WM, 8): g(kload(vKB, i, sNxt))
        advance(g)
        for i in range(WM): g(vload(vVB, i, sCur))
    def back_to_qk():
        g(f"s_mov_b64 vcc, {sr(sPar,2)}")
        g(f"s_waitcnt vmcnt({WM})")
        g("s_branch L_qk")
    g.label("L_hookC")
    stamp_sel(g, 4, sBI)
    g(f"s_cmp_eq_u32 {sr(sBI)}, 1")
    g("s_cbranch_scc1 L_hookC2")
    preissue()
    g.label("L_hookC2")
    if DBG2:
        g("s_memrealtime s[76:77]")
        g("s_waitcnt lgkmcnt(0)")
        g("s_mov_b32 s91, s76")
    xlane(g, vL, vT1, "v_add_f32")
    vA = vY
    g(f"s_lshl_b32 {sr(sT[0])}, {sr(sW)}, 12")
    if CB: g(f"s_add_u32 {sr(sT[0])}, {sr(sT[0])}, {CB}")
    swz_write(g, sT[0], vO, vA)
    g(f"s_lshl_b32 {sr(sT[0])}, {sr(sW)}, 2")
    g(f"s_add_u32 {sr(sT[0])}, {sr(sT[0])}, {ML}")
    g(f"v_lshlrev_b32 {vr(vA+4)}, 6, {vr(vT0)}")
    g(f"v_add_u32 {vr(vA+4)}, {sr(sT[0])}, {vr(vA+4)}")
    g(f"s_mov_b64 exec, {sr(sMask,2)}")
    for e in range(8):
        g(f"ds_write_b128 {vr(vA+(e>>1))}, {vr(vO+4*e,4)} offset:{16*(e&1)}")
    g("s_mov_b64 exec, 0xff")
    g(f"ds_write_b32 {vr(vA+4)}, {vr(vM_)}")
    g(f"ds_write_b32 {vr(vA+4)}, {vr(vL)} offset:32")
    g("s_mov_b64 exec, -1")
    g(f"v_bfe_u32 {vr(vT0)}, {vr(vLane)}, 2, 3")
    g(f"v_lshlrev_b32 {vr(vA+5)}, 6, {vr(vT0)}")
    g(f"v_add_u32 {vr(vA+5)}, {ML}, {vr(vA+5)}")
    g(f"v_lshrrev_b32 {vr(vT1)}, 5, {vr(vLane)}")
    g(f"v_xor_b32 {vr(vT1)}, {vr(vT1)}, {vr(vT0)}")
    g(f"v_lshlrev_b32 {vr(vT1)}, 5, {vr(vT1)}")
    g(f"s_lshl_b32 {sr(sT[0])}, {sr(sW)}, 6")
    g(f"v_xor_b32 {vr(vT1)}, {sr(sT[0])}, {vr(vT1)}")
    g(f"v_lshl_add_u32 {vr(vA+6)}, {vr(vT0)}, 9, {vr(vT1)}")
    g(f"v_and_b32 {vr(vT0)}, 3, {vr(vLane)}")
    g(f"v_lshl_add_u32 {vr(vA+6)}, {vr(vT0)}, 3, {vr(vA+6)}")
    g("s_waitcnt lgkmcnt(0)")
    g("s_barrier")
    mm = vD
    for i in range(4):
        g(f"ds_read_b128 {vr(mm+4*i,4)}, {vr(vA+5)} offset:{16*i}")
    for p in range(8):
        g(f"ds_read_b64 {vr(vO+2*p,2)}, {vr(vA+6)} offset:{CB + 4096*p}")
    g(f"s_lshl_b32 {sr(sT[0])}, {sr(sBI)}, 11")
    g(f"s_add_u32 {sr(sT[0])}, {sr(sT[0])}, {sr(sMB)}")
    g(f"s_lshl_b32 {sr(sT[1])}, {sr(sW)}, 8")
    g(f"s_add_u32 {sr(sT[0])}, {sr(sT[0])}, {sr(sT[1])}")
    g(f"s_add_u32 {sr(sT[0])}, {sr(sT[0])}, 8192")
    g(f"v_lshlrev_b32 {vr(vA+2)}, 2, {vr(vLane)}")
    g("s_waitcnt lgkmcnt(8)")
    g(f"v_max3_f32 {vr(vT0)}, {vr(mm)}, {vr(mm+1)}, {vr(mm+2)}")
    g(f"v_max3_f32 {vr(vT1)}, {vr(mm+3)}, {vr(mm+4)}, {vr(mm+5)}")
    g(f"v_max3_f32 {vr(vT0)}, {vr(vT0)}, {vr(mm+6)}, {vr(mm+7)}")
    g(f"v_max_f32 {vr(vT0)}, {vr(vT0)}, {vr(vT1)}")
    for p in range(8):
        g(f"v_sub_f32 {vr(mm+p)}, {vr(mm+p)}, {vr(vT0)}")
    for p in range(8):
        g(f"v_exp_f32 {vr(mm+p)}, {vr(mm+p)}")
    g("s_nop 0")
    g(f"v_mul_f32 {vr(vT1)}, {vr(mm)}, {vr(mm+8)}")
    for p in range(1, 8):
        g(f"v_fmac_f32 {vr(vT1)}, {vr(mm+p)}, {vr(mm+8+p)}")
    g(f"v_rcp_f32 {vr(vT1)}, {vr(vT1)}")
    g("s_waitcnt lgkmcnt(0)")
    R0, R1 = vP, vP + 1
    g(f"v_mul_f32 {vr(R0)}, {vr(mm)}, {vr(vO)}")
    g(f"v_mul_f32 {vr(R1)}, {vr(mm)}, {vr(vO+1)}")
    for p in range(1, 8):
        g(f"v_fmac_f32 {vr(R0)}, {vr(mm+p)}, {vr(vO+2*p)}")
        g(f"v_fmac_f32 {vr(R1)}, {vr(mm+p)}, {vr(vO+2*p+1)}")
    g(f"v_mul_f32 {vr(R0)}, {vr(R0)}, {vr(vT1)}")
    g(f"v_mul_f32 {vr(R1)}, {vr(R1)}, {vr(vT1)}")
    g(f"v_cvt_pk_bf16_f32 {vr(R0)}, {vr(R0)}, {vr(R1)}")
    g(f"v_min_u32 {vr(R0)}, -2, {vr(R0)}")
    g(f"s_mov_b32 {sr(sT[3])}, 0x11111111")
    g(f"s_mov_b32 {sr(sT[4])}, 0x11111111")
    for k in range(1, 4):
        g(f"v_mov_b32_dpp {vr(vP+k)}, {vr(R0)} quad_perm:[{k},{k},{k},{k}] row_mask:0xf bank_mask:0xf")
    g(f"s_mov_b64 exec, {sr(sT[3],2)}")
    g(f"buffer_store_dwordx4 {vr(vP,4)}, {vr(vA+2)}, {sr(sO,4)}, {sr(sT[0])} offen{MST}")
    g("s_mov_b64 exec, -1")
    stamp_sel(g, 6, sBI)
    g(f"s_cmp_eq_u32 {sr(sBI)}, 1")
    g(f"s_mov_b32 {sr(sOB)}, 1")
    g("s_cbranch_scc1 L_hookO2")
    g(f"s_mov_b32 {sr(sBI)}, 1")
    if DYN: g("s_memrealtime s[76:77]")
    load_qfrag(g)
    reset_state(g)
    g("s_waitcnt lgkmcnt(0)")
    if DYN:
        g(f"s_min_u32 {sr(sTH)}, s76, -2")
        g(f"s_cmp_lg_u32 {sr(sW)}, 0")
        g("s_cbranch_scc1 L_nots")
        g(f"v_mov_b32 {vr(vT0)}, {sr(sTH)}")
        g(f"s_add_u32 {sr(sT[2])}, {sr(sMB)}, {HDR}")
        g("s_mov_b64 exec, 1")
        g(f"buffer_store_dword {vr(vT0)}, off, {sr(sO,4)}, {sr(sT[2])}{MST}")
        g("s_mov_b64 exec, -1")
        g.label("L_nots")
    g(f"s_lshl_b32 {sr(sT[2])}, {sr(sBP)}, 5")
    g(f"s_load_dword {sr(sHS)}, s[16:17], {sr(sT[2])}")
    g(f"s_mov_b64 vcc, {sr(sPar,2)}")
    g(f"s_waitcnt vmcnt({WM+1})")
    g("s_branch L_qk")
    g.label("L_hookO")
    preissue()
    g(f"s_mov_b32 {sr(sOB)}, 0")
    g("s_waitcnt lgkmcnt(0)")
    g(f"s_cmp_ge_u32 {sr(sHS)}, 32")
    g("s_cbranch_scc1 L_hookO2")
    g(f"s_lshl_b32 {sr(sT[2])}, {sr(sBP)}, 5")
    g(f"s_mov_b32 {sr(sT[4])}, 0")
    g.label("L_hspoll")
    g(f"buffer_load_dword {vr(vT0)}, off, {sr(sDBG,4)}, {sr(sT[2])} sc1")
    g("s_waitcnt vmcnt(0)")
    g(f"v_readfirstlane_b32 {sr(sT[5])}, {vr(vT0)}")
    g(f"s_add_u32 {sr(sT[4])}, {sr(sT[4])}, 1")
    g(f"s_cmp_ge_u32 {sr(sT[5])}, 32")
    g("s_cbranch_scc1 L_hookO2")
    g(f"s_cmp_ge_u32 {sr(sT[4])}, 0x20000")
    g("s_cbranch_scc1 L_hookO2")
    g("s_sleep 8")
    g("s_branch L_hspoll")
    g.label("L_hookO2")
    g(f"s_lshl_b32 {sr(sT[1])}, {sr(sKQ)}, 3")
    g(f"s_add_u32 {sr(sT[1])}, {sr(sT[1])}, {sr(sW)}")
    g(f"s_mul_i32 {sr(sT[1])}, {sr(sT[1])}, {MBS}")
    g(f"s_add_u32 {sr(sT[1])}, {sr(sT[1])}, {sr(sGB)}")
    if DYN: g(f"s_add_u32 {sr(sT[6])}, {sr(sT[1])}, {HDR}")
    g(f"s_lshl_b32 {sr(sT[2])}, {sr(sOB)}, 11")
    g(f"s_add_u32 {sr(sT[1])}, {sr(sT[1])}, {sr(sT[2])}")
    g(f"s_add_u32 {sr(sT[1])}, {sr(sT[1])}, 8192")
    g(f"v_and_b32 {vr(vT0)}, 7, {vr(vLane)}")
    g(f"v_lshrrev_b32 {vr(vT1)}, 4, {vr(vLane)}")
    g(f"v_lshlrev_b32 {vr(vT1)}, 7, {vr(vT1)}")
    g(f"v_lshl_add_u32 {vr(vAl)}, {vr(vT0)}, 4, {vr(vT1)}")
    Bf = [vY, vY + 4, vVt, vVt + 4]
    LT = [vP, vQ, vQ + 4, vX4]
    g(f"v_mov_b32 {vr(vMn)}, {vr(vX4)}")
    lf = [(2, e, 8192 + 1024 * (e - 5)) for e in range(5, 8)] + [(3, e, 1024 * e) for e in range(8)]
    def ldsread(k): g(f"ds_read_b128 {vr(LT[k % 4],4)}, {vr(vMn)} offset:{lf[k][2]}")
    for k in range(4): ldsread(k)
    g(f"s_mov_b32 {sr(sT[4])}, 0")
    bo = [sT[0], sT[2], sT[3], sT[5]]
    for s in range(4):
        if WROT:
            g(f"s_add_u32 {sr(bo[s])}, {sr(sBP)}, {s}")
            g(f"s_and_b32 {sr(bo[s])}, {sr(bo[s])}, 3")
            g(f"s_lshl_b32 {sr(bo[s])}, {sr(bo[s])}, 9")
            g(f"s_add_u32 {sr(bo[s])}, {sr(bo[s])}, {sr(sT[1])}")
        else:
            g(f"s_add_u32 {sr(bo[s])}, {sr(sT[1])}, {512*s}")
    g.label("L_poll")
    for s in range(4):
        g(f"buffer_load_dwordx4 {vr(Bf[s],4)}, {vr(vAl)}, {sr(sO,4)}, {sr(bo[s])} offen{MLD}")
    if DYN: g(f"buffer_load_dword {vr(vWo)}, off, {sr(sO,4)}, {sr(sT[6])}{MLD}")
    g("s_waitcnt vmcnt(0)")
    g(f"v_max3_u32 {vr(vT0)}, {vr(vY)}, {vr(vY+1)}, {vr(vY+2)}")
    if DYN: g(f"v_max_u32 {vr(vT0)}, {vr(vT0)}, {vr(vWo)}")
    g(f"v_max3_u32 {vr(vT1)}, {vr(vY+3)}, {vr(vY+4)}, {vr(vY+5)}")
    for k in range(6, 16, 4):
        g(f"v_max3_u32 {vr(vT0)}, {vr(vT0)}, {vr(vY+k)}, {vr(vY+k+1)}")
        if k + 3 < 16: g(f"v_max3_u32 {vr(vT1)}, {vr(vT1)}, {vr(vY+k+2)}, {vr(vY+k+3)}")
    g(f"v_max_u32 {vr(vT0)}, {vr(vT0)}, {vr(vT1)}")
    g(f"v_cmp_eq_u32 vcc, -1, {vr(vT0)}")
    g("s_cbranch_vccz L_polled")
    g(f"s_add_u32 {sr(sT[4])}, {sr(sT[4])}, 1")
    g(f"s_cmp_ge_u32 {sr(sT[4])}, 0x20000")
    g("s_cbranch_scc1 L_polled")
    g("s_sleep 1")
    g("s_branch L_poll")
    g.label("L_polled")
    stamp_sel(g, 8, sOB)
    rf = [(0, e, vSP + 4 * e) for e in range(8)] + [(1, e, vSP + 32 + 4 * e) for e in range(8)] + [(2, e, vSP + 64 + 4 * e) for e in range(5)]
    def mf(s, e, a):
        acc = vD + 4 * e
        c = "0" if s == 0 else vr(acc, 4)
        g(f"v_mfma_f32_16x16x32_bf16 {vr(acc,4)}, {vr(a,4)}, {vr(Bf[s],4)}, {c}")
    for k in range(8): mf(*rf[k])
    ri = 8
    nissued = 4
    for k in range(len(lf)):
        outstanding = nissued - k - 1
        g(f"s_waitcnt lgkmcnt({outstanding})")
        mf(lf[k][0], lf[k][1], LT[k % 4])
        if ri < len(rf): mf(*rf[ri]); ri += 1
        else: g("s_nop 1")
        if nissued < len(lf):
            ldsread(nissued); nissued += 1
    while ri < len(rf): mf(*rf[ri]); ri += 1
    g(f"v_mov_b32 {vr(vX4)}, {vr(vMn)}")
    vA = vY
    g(f"s_lshl_b32 {sr(sT[0])}, {sr(sW)}, 12")
    g(f"s_add_u32 {sr(sT[0])}, {sr(sT[0])}, {RB}")
    swz_write(g, sT[0], vD, vA)
    g(f"v_lshrrev_b32 {vr(vT1)}, 4, {vr(vLane)}")
    g(f"s_and_b32 {sr(sT[0])}, {sr(sW)}, 1")
    g(f"s_lshl_b32 {sr(sT[0])}, {sr(sT[0])}, 2")
    g(f"v_add_u32 {vr(vT1)}, {sr(sT[0])}, {vr(vT1)}")
    g(f"v_and_b32 {vr(vA+4)}, 3, {vr(vLane)}")
    g(f"v_xor_b32 {vr(vA+4)}, {vr(vA+4)}, {vr(vT1)}")
    g(f"v_lshlrev_b32 {vr(vA+4)}, 5, {vr(vA+4)}")
    g(f"s_lshr_b32 {sr(sT[0])}, {sr(sW)}, 1")
    g(f"s_lshl_b32 {sr(sT[0])}, {sr(sT[0])}, 7")
    g(f"v_xor_b32 {vr(vA+4)}, {sr(sT[0])}, {vr(vA+4)}")
    g(f"v_lshl_add_u32 {vr(vA+4)}, {vr(vT1)}, 9, {vr(vA+4)}")
    g(f"v_and_b32 {vr(vT1)}, 12, {vr(vLane)}")
    g(f"v_add_u32 {vr(vA+4)}, {vr(vT1)}, {vr(vA+4)}")
    g(f"s_mov_b64 exec, {sr(sMask,2)}")
    for e in range(8):
        g(f"ds_write_b128 {vr(vA+(e>>1))}, {vr(vD+4*e,4)} offset:{16*(e&1)}")
    if DYN:
        g(f"s_lshl_b32 {sr(sT[0])}, {sr(sW)}, 2")
        g(f"s_add_u32 {sr(sT[0])}, {sr(sT[0])}, {TS}")
        g(f"v_mov_b32 {vr(vT0)}, {sr(sT[0])}")
        g("s_mov_b64 exec, 1")
        g(f"ds_write_b32 {vr(vT0)}, {vr(vWo)}")
    g("s_mov_b64 exec, -1")
    g(f"s_lshl_b32 {sr(sT[0])}, {sr(sOB)}, 12")
    g(f"s_add_u32 {sr(sT[0])}, {sr(sT[0])}, {sr(sMB)}")
    g(f"s_lshl_b32 {sr(sT[1])}, {sr(sW)}, 9")
    g(f"s_add_u32 {sr(sT[0])}, {sr(sT[0])}, {sr(sT[1])}")
    g(f"v_lshlrev_b32 {vr(vA+5)}, 3, {vr(vLane)}")
    g(f"s_mov_b32 {sr(sT[3])}, 0x55555555")
    g(f"s_mov_b32 {sr(sT[4])}, 0x55555555")
    g("s_waitcnt lgkmcnt(0)")
    g("s_barrier")
    U = vD
    for p in range(8):
        g(f"ds_read_b32 {vr(U+2*p)}, {vr(vA+4)} offset:{RB + 4096*p}")
        g(f"ds_read_b32 {vr(U+2*p+1)}, {vr(vA+4)} offset:{RB + 4096*p + 16}")
    g("s_waitcnt lgkmcnt(0)")
    for p in (4, 2, 1):
        for q in range(p):
            for u in range(2):
                g(f"v_add_f32 {vr(U+2*q+u)}, {vr(U+2*q+u)}, {vr(U+2*(q+p)+u)}")
    g(f"v_min_u32 {vr(U)}, -2, {vr(U)}")
    g(f"v_min_u32 {vr(U+1)}, -2, {vr(U+1)}")
    g("s_nop 1")
    g(f"v_mov_b32_dpp {vr(U+2)}, {vr(U)} quad_perm:[1,1,3,3] row_mask:0xf bank_mask:0xf")
    g(f"v_mov_b32_dpp {vr(U+3)}, {vr(U+1)} quad_perm:[1,1,3,3] row_mask:0xf bank_mask:0xf")
    g(f"s_mov_b64 exec, {sr(sT[3],2)}")
    g(f"buffer_store_dwordx4 {vr(U,4)}, {vr(vA+5)}, {sr(sO,4)}, {sr(sT[0])} offen{MST}")
    g("s_mov_b64 exec, -1")
    stamp_sel(g, 10, sOB)
    g(f"s_cmp_eq_u32 {sr(sOB)}, 1")
    g("s_cbranch_scc1 L_hookF2")
    load_qfrag(g)
    if DYN:
        g(f"v_mov_b32 {vr(vT1)}, {TS}")
        g(f"ds_read_b128 {vr(vY,4)}, {vr(vT1)}")
        g(f"ds_read_b128 {vr(vY+4,4)}, {vr(vT1)} offset:16")
    g("s_waitcnt lgkmcnt(0)")
    if DYN:
        g(f"v_add3_u32 {vr(vY)}, {vr(vY)}, {vr(vY+1)}, {vr(vY+2)}")
        g(f"v_add3_u32 {vr(vY+3)}, {vr(vY+3)}, {vr(vY+4)}, {vr(vY+5)}")
        g(f"v_add3_u32 {vr(vY)}, {vr(vY)}, {vr(vY+6)}, {vr(vY+7)}")
        g(f"v_add_u32 {vr(vY)}, {vr(vY)}, {vr(vY+3)}")
        g("s_nop 0")
        g(f"v_readfirstlane_b32 {sr(sT[0])}, {vr(vY)}")
        g(f"s_lshl_b32 {sr(sT[1])}, {sr(sTH)}, 3")
        g(f"s_sub_u32 {sr(sT[1])}, {sr(sT[1])}, {sr(sT[0])}")
        if MULTI:
            g(f"s_mov_b32 {sr(sLvl)}, 0")
            for k, th in enumerate(LT_):
                g(f"s_cmp_gt_i32 {sr(sT[1])}, {8*th}")
                g(f"s_cselect_b32 {sr(sLvl)}, {k+1}, {sr(sLvl)}")
            if DBG:
                g(f"s_mul_i32 {sr(sT[0])}, {sr(sLvl)}, 100")
                g(f"s_add_u32 {sr(sSt+15)}, {sr(sSt)}, {sr(sT[0])}")
        else:
            g(f"s_cmp_gt_i32 {sr(sT[1])}, {8*DTH}")
            g(f"s_cselect_b32 {sr(sPar)}, 1, 0")
    g(f"s_mov_b64 vcc, {sr(sPar,2)}")
    g("s_branch L_qk")
    g.label("L_hookF")
    g(f"s_cmp_lg_u32 {sr(sW)}, 0")
    g("s_cbranch_scc1 L_krest")
    preissue()
    g.label("L_hookF2")
    g(f"s_cmp_lg_u32 {sr(sW)}, 0")
    g("s_cbranch_scc1 L_fin")
    g(f"s_and_b32 {sr(sT[1])}, {sr(sH)}, 7")
    g(f"s_mul_i32 {sr(sT[1])}, {sr(sT[1])}, {MBS}")
    g(f"s_add_u32 {sr(sT[1])}, {sr(sT[1])}, {sr(sGB)}")
    g(f"s_lshl_b32 {sr(sT[2])}, {sr(sOB)}, 12")
    g(f"s_add_u32 {sr(sT[1])}, {sr(sT[1])}, {sr(sT[2])}")
    g(f"s_lshl_b32 {sr(sT[2])}, {sr(sKQ)}, 10")
    g(f"s_add_u32 {sr(sT[1])}, {sr(sT[1])}, {sr(sT[2])}")
    g(f"s_add_u32 {sr(sT[2])}, {sr(sT[1])}, {8*MBS}")
    g(f"s_add_u32 {sr(sT[3])}, {sr(sT[1])}, {16*MBS}")
    g(f"s_add_u32 {sr(sT[5])}, {sr(sT[1])}, {24*MBS}")
    g(f"s_lshl_b32 {sr(sT[0])}, {sr(sBP)}, 1")
    g(f"s_add_u32 {sr(sT[0])}, {sr(sT[0])}, {sr(sOB)}")
    g(f"s_lshl_b32 {sr(sT[0])}, {sr(sT[0])}, 14")
    g(f"s_lshl_b32 {sr(sT[6])}, {sr(sCB)}, 8")
    g(f"s_add_u32 {sr(sT[0])}, {sr(sT[0])}, {sr(sT[6])}")
    g(f"s_lshl_b32 {sr(sT[6])}, {sr(sKQ)}, 6")
    g(f"s_add_u32 {sr(sT[0])}, {sr(sT[0])}, {sr(sT[6])}")
    g(f"v_lshrrev_b32 {vr(vAl)}, 3, {vr(vLane)}")
    g(f"v_and_b32 {vr(vT1)}, 7, {vr(vLane)}")
    g(f"v_lshlrev_b32 {vr(vAl)}, 11, {vr(vAl)}")
    g(f"v_lshl_add_u32 {vr(vAl)}, {vr(vT1)}, 3, {vr(vAl)}")
    g(f"s_mov_b32 {sr(sT[4])}, 0")
    g.label("L_fpoll")
    for ks, so in enumerate([sT[1], sT[2], sT[3], sT[5]]):
        g(f"buffer_load_dwordx4 {vr(vY+4*ks,4)}, {vr(vV)}, {sr(sO,4)}, {sr(so)} offen{MLD}")
    g("s_waitcnt vmcnt(0)")
    g(f"v_max3_u32 {vr(vT0)}, {vr(vY)}, {vr(vY+1)}, {vr(vY+2)}")
    g(f"v_max3_u32 {vr(vT1)}, {vr(vY+3)}, {vr(vY+4)}, {vr(vY+5)}")
    for k in range(6, 16, 4):
        g(f"v_max3_u32 {vr(vT0)}, {vr(vT0)}, {vr(vY+k)}, {vr(vY+k+1)}")
        if k + 3 < 16: g(f"v_max3_u32 {vr(vT1)}, {vr(vT1)}, {vr(vY+k+2)}, {vr(vY+k+3)}")
    g(f"v_max_u32 {vr(vT0)}, {vr(vT0)}, {vr(vT1)}")
    g(f"v_cmp_eq_u32 vcc, -1, {vr(vT0)}")
    g("s_cbranch_vccz L_fpolled")
    g(f"s_add_u32 {sr(sT[4])}, {sr(sT[4])}, 1")
    g(f"s_cmp_ge_u32 {sr(sT[4])}, 0x20000")
    g("s_cbranch_scc1 L_fpolled")
    g("s_sleep 1")
    g("s_branch L_fpoll")
    g.label("L_fpolled")
    for c in range(4):
        g(f"v_add_f32 {vr(vY+c)}, {vr(vY+c)}, {vr(vY+4+c)}")
        g(f"v_add_f32 {vr(vY+8+c)}, {vr(vY+8+c)}, {vr(vY+12+c)}")
    for c in range(4):
        g(f"v_add_f32 {vr(vY+c)}, {vr(vY+c)}, {vr(vY+8+c)}")
    g(f"v_cvt_pk_bf16_f32 {vr(vY)}, {vr(vY)}, {vr(vY+1)}")
    g(f"v_cvt_pk_bf16_f32 {vr(vY+1)}, {vr(vY+2)}, {vr(vY+3)}")
    g(f"buffer_store_dwordx2 {vr(vY,2)}, {vr(vAl)}, {sr(sOUT,4)}, {sr(sT[0])} offen")
    g(f"s_cmp_eq_u32 {sr(sOB)}, 1")
    g("s_cbranch_scc1 L_fin")
    stamp(g, 13)
    g(f"s_mov_b64 vcc, {sr(sPar,2)}")
    g("s_nop 1")
    g("s_branch L_qk")
    g.label("L_fin")
    if DBG2:
        g(f"s_cmp_lg_u32 {sr(sW)}, 0")
        g("s_cbranch_scc1 L_end")
        g("s_waitcnt vmcnt(0)")
        g("s_memrealtime s[92:93]")
        g("s_waitcnt lgkmcnt(0)")
        g("s_not_b32 s94, s94")
        g("v_mov_b32 v1, s94")
        g("v_mov_b32 v2, s92")
        g("v_mov_b32 v3, s91")
        g("s_mov_b64 exec, 1")
        g(f"buffer_atomic_umax v1, off, {sr(sDBG,4)}, 0 offset:4 sc1")
        g(f"buffer_atomic_umax v2, off, {sr(sDBG,4)}, 0 offset:8 sc1")
        g(f"buffer_atomic_umax v3, off, {sr(sDBG,4)}, 0 offset:12 sc1")
    if DBG: g("s_waitcnt vmcnt(0)")
    stamp(g, 14)
    stamp_flush(g, 16)
    g.label("L_end")
    g("s_endpgm")

g = G()
g.raw(f"; @launch grid=(256,1,1) block=(512,1,1) lds={LDS}")
g.raw('.amdgcn_target "amdgcn-amd-amdhsa--gfx950"\n.text')
kernel(g)
g.raw('.section .rodata,"a"\n.p2align 6')
g.raw(".amdhsa_kernel standalone__mha_block_cached__sampling_kernel")
g.raw(f"  .amdhsa_next_free_vgpr 256\n  .amdhsa_next_free_sgpr 102\n  .amdhsa_accum_offset 256")
g.raw("  .amdhsa_group_segment_fixed_size 0\n  .amdhsa_kernarg_size 64\n  .amdhsa_user_sgpr_count 2")
g.raw("  .amdhsa_user_sgpr_kernarg_segment_ptr 1\n  .amdhsa_system_sgpr_workgroup_id_x 1")
g.raw("  .amdhsa_float_denorm_mode_32 3\n  .amdhsa_float_denorm_mode_16_64 3")
g.raw(".end_amdhsa_kernel")
open(sys.argv[1], "w").write(g.text())
```

```python
import sys, math, struct, os

def f32bits(x): return struct.unpack("<I", struct.pack("<f", x))[0]
OPT = dict(kv.split("=") for kv in sys.argv[2:])
WA = int(OPT.get("WA", 3))
WB = int(OPT.get("WB", 5))
WQ = int(OPT.get("WQ", 6))
DBG = int(OPT.get("dbg", 0))
OPB = int(OPT.get("opb", 10))
OPF = int(OPT.get("opf", 12))
QTAIL = int(OPT.get("qtail", 8))
PAR = OPT.get("par", "slow")
NLDS = int(OPT.get("nlds", 11))
NOW = int(OPT.get("now", 0))
def pol(s): return "" if s == "-" else " " + s.replace("+", " ")
MST = pol(OPT.get("mst", "sc1"))
MLD = pol(OPT.get("mld", "sc1"))
CLR = pol(OPT.get("clr", "sc1"))
PRIO = int(OPT.get("prio", 0))
HALFCLR = int(OPT.get("halfclr", 0))
CLRAT = int(OPT.get("clrat", 3))
CBX = int(OPT.get("cbx", 0))
DYN = int(OPT.get("dyn", 0))
DTH = int(OPT.get("dth", 0))
NOCLR = int(OPT.get("noclr", 0))
DBG2 = int(OPT.get("dbg2", 0))
HMAP = OPT.get("hmap", "B")
QROT = int(OPT.get("qrot", 0))
WROT = int(OPT.get("wrot", 0))
assert WB >= WA
LV = [int(z) for z in OPT.get("lv", f"{WA},{WB}").split(",")]
LT_ = [int(z) for z in OPT.get("lt", "0").split(",")]
WM = max(LV)
MULTI = "lv" in OPT
sLvl = 31

class G:
    def __init__(self): self.L = []; self.q = []; self.nl = 0
    def __call__(self, s): self.L.append("  " + s)
    def label(self, s): self.L.append(s + ":")
    def raw(self, s): self.L.append(s)
    def text(self): return "\n".join(self.L) + "\n"
    def newlabel(self):
        self.nl += 1; return f"L_t{self.nl}"
    def vm(self, s, tag):
        self(s); self.q.append(tag)
    def wait_idx(self, idx):
        n = len(self.q) - 1 - idx
        assert n >= 0
        self(f"s_waitcnt vmcnt({min(n,63)})")
        if n <= 63: self.q = self.q[idx + 1:]
    def wait_tag(self, tag):
        idx = [i for i, t in enumerate(self.q) if t == tag]
        if idx: self.wait_idx(idx[-1])
    def throttle(self, w, pred=lambda t: True):
        idx = [i for i, t in enumerate(self.q) if pred(t)]
        if len(idx) >= w: self.wait_idx(idx[-w])

def vr(a, n=1): return f"v{a}" if n == 1 else f"v[{a}:{a+n-1}]"
def sr(a, n=1): return f"s{a}" if n == 1 else f"s[{a}:{a+n-1}]"

sK, sV, sWQ, sX, sWO, sO, sOUT, sDBG = 20, 24, 28, 32, 36, 40, 44, 48
sW, sH, sBP, sCB, sCur, sNxt, sSelLo, sSelHi, sC = 52, 53, 54, 55, 56, 57, 58, 59, 60
sT = [61, 62, 63, 64, 65, 66, 67]
sLW, sMB = 68, 69
sMask = 70
sBI, sN, sBase, sRot, sWoB, sOB = 72, 73, 74, 75, 78, 79
sKQ = 3
sSt = 80
sPar = 100
sHS = 28
sGB = 29
vWo = 0
vK, vK2, vV, vV2 = 1, 2, 3, 4
vM_, vL, vAl, vT0, vT1, vMn, vLane = 5, 6, 7, 8, 9, 10, 11
vP = 12; vY = 16; vVt = 24; vQ = 32; vO = 40; vD = 72; vKB = 104; vVB = 136; vSP = 168
vK1 = 168; vV1 = 200
vX4 = 252
QP = 0
CB = 0; RB = 32768
LW = 65536; LWS = 11264
QF = LW + 8 * LWS; QFS = 272
ML = QF + 16 * QFS
TS = ML + 512
LDS = TS + 64
assert LDS <= 163840
MBS = 12416
HDR = 12288
sTH = 30
SCALE = (128 ** -0.5) * math.log2(math.e)

def stamp(g, i):
    if not DBG: return
    g("s_memrealtime s[76:77]")
    g("s_waitcnt lgkmcnt(0)")
    g(f"s_mov_b32 {sr(sSt+i)}, s76")
def stamp_sel(g, i, s):
    if not DBG: return
    g("s_memrealtime s[76:77]")
    g("s_waitcnt lgkmcnt(0)")
    g(f"s_cmp_eq_u32 {sr(s)}, 0")
    g(f"s_cselect_b32 {sr(sSt+i)}, s76, {sr(sSt+i)}")
    g(f"s_cselect_b32 {sr(sSt+i+1)}, {sr(sSt+i+1)}, s76")
def stamp_flush(g, n):
    if not DBG: return
    g("s_mov_b32 s96, s18"); g("s_mov_b32 s97, s19"); g("s_mov_b32 s98, 0x2000000"); g("s_mov_b32 s99, 0x00020000")
    g("s_lshl_b32 s76, s2, 3"); g(f"s_add_u32 s76, s76, {sr(sW)}"); g("s_lshl_b32 s76, s76, 6"); g("s_add_u32 s76, s76, 0x1000000")
    g("s_mov_b64 exec, 1")
    for i in range(n):
        g(f"v_mov_b32 v1, {sr(sSt+i)}")
        g(f"buffer_store_dword v1, off, s[96:99], s76 offset:{4*i}")
    g("s_mov_b64 exec, -1")

def srd(g, d, p, size):
    g(f"s_mov_b32 {sr(d)}, {sr(p)}")
    g(f"s_mov_b32 {sr(d+1)}, {sr(p+1)}")
    g(f"s_mov_b32 {sr(d+2)}, {size:#x}")
    g(f"s_mov_b32 {sr(d+3)}, 0x00020000")

def koffs(i):
    G_, j = i >> 1, i & 1
    return (vK2 if G_ >= 2 else vK), (G_ & 1) * 2048 + 128 * j
def voffs(i):
    return (vV2 if i >= 4 else vV), 1024 * (i % 4)
def kload(buf, i, so):
    a, o = koffs(i)
    return f"buffer_load_dwordx4 {vr(buf+4*i,4)}, {vr(a)}, {sr(sK,4)}, {sr(so)} offen offset:{o} nt"
def vload(buf, i, so):
    a, o = voffs(i)
    return f"buffer_load_dwordx4 {vr(buf+4*i,4)}, {vr(a)}, {sr(sV,4)}, {sr(so)} offen offset:{o} nt"

def advance(g):
    g(f"s_mov_b32 {sr(sCur)}, {sr(sNxt)}")
    g(f"s_add_u32 {sr(sN)}, {sr(sN)}, 1")
    g(f"s_add_u32 {sr(sRot)}, {sr(sRot)}, 0x10000")
    g(f"s_and_b32 {sr(sRot)}, {sr(sRot)}, 0x70000")
    g(f"s_cmp_eq_u32 {sr(sN)}, 7")
    g(f"s_cselect_b32 {sr(sT[0])}, 0x1000000, 0")
    g(f"s_add_u32 {sr(sBase)}, {sr(sBase)}, {sr(sT[0])}")
    g(f"s_add_u32 {sr(sNxt)}, {sr(sBase)}, {sr(sRot)}")

def perm4(g, dst, rows, e):
    sel = sSelHi if (e & 1) else sSelLo
    for t in range(4):
        g(f"v_perm_b32 {vr(dst+t)}, {vr(rows[2*t+1] + (e>>1))}, {vr(rows[2*t] + (e>>1))}, {sr(sel)}")

def perm_mfma(g, rows, accbase, bfrag, first, es=range(8)):
    es = list(es)
    perm4(g, vVt + 4 * (es[0] & 1), rows, es[0])
    for n, e in enumerate(es):
        if n + 1 < len(es): perm4(g, vVt + 4 * (es[n+1] & 1), rows, es[n + 1])
        else: g("s_nop 1")
        T = vVt + 4 * (e & 1)
        a = accbase + 4 * e
        c = "0" if first else vr(a, 4)
        g(f"v_mfma_f32_16x16x32_bf16 {vr(a,4)}, {vr(T,4)}, {vr(bfrag,4)}, {c}")

def xlane(g, x, t, op):
    g(f"v_mov_b32 {vr(t)}, {vr(x)}")
    g("s_nop 1")
    g(f"v_permlane16_swap_b32 {vr(t)}, {vr(x)}")
    g(f"{op} {vr(x)}, {vr(x)}, {vr(t)}")
    g(f"v_mov_b32 {vr(t)}, {vr(x)}")
    g("s_nop 1")
    g(f"v_permlane32_swap_b32 {vr(t)}, {vr(x)}")
    g(f"{op} {vr(x)}, {vr(x)}, {vr(t)}")

def qk(g, KB):
    def M(D, G_):
        for j in range(2):
            c = "0" if j == 0 else vr(D, 16)
            g(f"v_mfma_f32_32x32x16_bf16 {vr(D,16)}, {vr(KB + 4*(2*G_+j), 4)}, {vr(vQ + 4*j, 4)}, {c}")
    def red(D, G_):
        for i in range(4):
            g(f"v_add_f32_dpp {vr(D+4*i)}, {vr(D+4*i+1)}, {vr(D+4*i)} row_ror:8 row_mask:0x5 bank_mask:0xf")
            g(f"v_add_f32_dpp {vr(D+4*i)}, {vr(D+4*i+3)}, {vr(D+4*i+2)} row_ror:8 row_mask:0xa bank_mask:0xf")
        g("s_nop 1")
        g(f"v_permlane16_swap_b32 {vr(D)}, {vr(D+4)}")
        g(f"v_permlane16_swap_b32 {vr(D+8)}, {vr(D+12)}")
        g(f"v_add_f32 {vr(vY+2*G_)}, {vr(D)}, {vr(D+4)}")
        g(f"v_add_f32 {vr(vY+2*G_+1)}, {vr(D+8)}, {vr(D+12)}")
    D0, D1 = vD, vD + 16
    M(D0, 0); M(D1, 1)
    g("s_nop 9")
    red(D0, 0); M(D0, 2); red(D1, 1); M(D1, 3); red(D0, 2); red(D1, 3)

def sm1(g):
    Y = vY
    g(f"v_max3_f32 {vr(vT0)}, {vr(Y)}, {vr(Y+1)}, {vr(Y+2)}")
    g(f"v_max3_f32 {vr(vT1)}, {vr(Y+3)}, {vr(Y+4)}, {vr(Y+5)}")
    g(f"v_max3_f32 {vr(vT0)}, {vr(vT0)}, {vr(Y+6)}, {vr(Y+7)}")
    g(f"v_max_f32 {vr(vT0)}, {vr(vT0)}, {vr(vT1)}")
    xlane(g, vT0, vT1, "v_max_f32")
    g(f"v_mul_f32 {vr(vT0)}, {sr(sC)}, {vr(vT0)}")
    g(f"v_max_f32 {vr(vMn)}, {vr(vM_)}, {vr(vT0)}")
    g(f"v_sub_f32 {vr(vT1)}, {vr(vM_)}, {vr(vMn)}")
    g(f"v_exp_f32 {vr(vAl)}, {vr(vT1)}")
    g(f"v_mov_b32 {vr(vM_)}, {vr(vMn)}")
    for i in range(8):
        g(f"v_fma_f32 {vr(Y+i)}, {vr(Y+i)}, {sr(sC)}, -{vr(vMn)}")
    for i in range(8):
        g(f"v_exp_f32 {vr(Y+i)}, {vr(Y+i)}")
    g(f"v_mul_f32 {vr(vL)}, {vr(vL)}, {vr(vAl)}")
    for u in range(4):
        g(f"v_cvt_pk_bf16_f32 {vr(vP+u)}, {vr(Y+2*u)}, {vr(Y+2*u+1)}")
    g(f"v_add_f32 {vr(vT0)}, {vr(Y)}, {vr(Y+1)}")
    g(f"v_add_f32 {vr(vT1)}, {vr(Y+2)}, {vr(Y+3)}")
    g(f"v_add_f32 {vr(Y+4)}, {vr(Y+4)}, {vr(Y+5)}")
    g(f"v_add_f32 {vr(Y+6)}, {vr(Y+6)}, {vr(Y+7)}")
    g(f"v_add_f32 {vr(vT0)}, {vr(vT0)}, {vr(vT1)}")
    g(f"v_add_f32 {vr(Y+4)}, {vr(Y+4)}, {vr(Y+6)}")
    g(f"v_add_f32 {vr(vL)}, {vr(vL)}, {vr(vT0)}")
    g(f"v_add_f32 {vr(vL)}, {vr(vL)}, {vr(Y+4)}")
def sm2(g):
    for i in range(32):
        g(f"v_mul_f32 {vr(vO+i)}, {vr(vO+i)}, {vr(vAl)}")
def pv(g, VB, es=range(8)):
    perm_mfma(g, [VB + 4 * i for i in range(8)], vO, vP, False, es)

def load_qfrag(g):
    g(f"v_and_b32 {vr(vT0)}, 7, {vr(vLane)}")
    g(f"v_lshrrev_b32 {vr(vT1)}, 3, {vr(vLane)}")
    g(f"v_mul_u32_u24 {vr(vT0)}, {QFS}, {vr(vT0)}")
    g(f"v_lshl_add_u32 {vr(vT0)}, {vr(vT1)}, 4, {vr(vT0)}")
    g(f"s_mul_i32 {sr(sT[0])}, {sr(sBI)}, {8*QFS}")
    g(f"s_add_u32 {sr(sT[0])}, {sr(sT[0])}, {QF}")
    g(f"v_add_u32 {vr(vT0)}, {sr(sT[0])}, {vr(vT0)}")
    for j in range(2):
        g(f"ds_read_b128 {vr(vQ+4*j,4)}, {vr(vT0)} offset:{128*j}")
def reset_state(g):
    g(f"v_mov_b32 {vr(vM_)}, 0xff7fffff")
    g(f"v_mov_b32 {vr(vL)}, 0")
    for i in range(32):
        g(f"v_mov_b32 {vr(vO+i)}, 0")

def dwait(g, ca, cb):
    if ca == cb or PAR == "none":
        g(f"s_waitcnt vmcnt({ca})"); return
    l = g.newlabel()
    g(f"s_cbranch_vccnz {l}")
    g(f"s_waitcnt vmcnt({ca})")
    g.label(l)
    g(f"s_waitcnt vmcnt({cb})")

def mwait(g):
    if not MULTI:
        dwait(g, WA - 1, WB - 1); return
    ls = [g.newlabel() for _ in LV]
    for k in range(len(LV) - 1, 0, -1):
        g(f"s_cmp_ge_u32 {sr(sLvl)}, {k}")
        g(f"s_cbranch_scc1 {ls[k]}")
    for k in range(len(LV)):
        if k: g.label(ls[k])
        g(f"s_waitcnt vmcnt({LV[k]-1})")

def swz_write(g, base_s, src, A):
    g(f"v_and_b32 {vr(vT0)}, 15, {vr(vLane)}")
    g(f"v_lshrrev_b32 {vr(vT1)}, 4, {vr(vLane)}")
    g(f"v_lshlrev_b32 {vr(vT1)}, 7, {vr(vT1)}")
    g(f"v_lshlrev_b32 {vr(A)}, 5, {vr(vT0)}")
    g(f"v_xor_b32 {vr(vT1)}, {vr(vT1)}, {vr(A)}")
    g(f"v_lshl_add_u32 {vr(A)}, {vr(vT0)}, 9, {vr(vT1)}")
    g(f"v_add_u32 {vr(A)}, {sr(base_s)}, {vr(A)}")
    for k in range(1, 4):
        g(f"v_xor_b32 {vr(A+k)}, {32*k}, {vr(A)}")

def kernel(g):
    NAME = "standalone__mha_block_cached__sampling_kernel"
    g.raw(f".globl {NAME}\n.p2align 8\n.type {NAME},@function")
    g.label(NAME)
    g("s_cmp_ge_u32 s2, 256")
    g("s_cbranch_scc1 L_end")
    g("s_load_dwordx16 s[4:19], s[0:1], 0")
    g(f"v_lshrrev_b32 {vr(vT0)}, 6, v0")
    g(f"v_and_b32 {vr(vLane)}, 63, v0")
    g(f"v_readfirstlane_b32 {sr(sW)}, {vr(vT0)}")
    if HMAP == "A":
        g(f"s_and_b32 {sr(sH)}, s2, 31")
    elif HMAP == "B":
        g(f"s_and_b32 {sr(sT[0])}, s2, 7")
        g(f"s_bfe_u32 {sr(sT[1])}, s2, 0x20003")
        g(f"s_lshl_b32 {sr(sH)}, {sr(sT[0])}, 2")
        g(f"s_or_b32 {sr(sH)}, {sr(sH)}, {sr(sT[1])}")
    else:
        g(f"s_and_b32 {sr(sH)}, s2, 1")
        g(f"s_bfe_u32 {sr(sT[1])}, s2, 0x20003")
        g(f"s_lshl_b32 {sr(sT[1])}, {sr(sT[1])}, 1")
        g(f"s_or_b32 {sr(sH)}, {sr(sH)}, {sr(sT[1])}")
        g(f"s_bfe_u32 {sr(sT[1])}, s2, 0x20001")
        g(f"s_lshl_b32 {sr(sT[1])}, {sr(sT[1])}, 3")
        g(f"s_or_b32 {sr(sH)}, {sr(sH)}, {sr(sT[1])}")
    g(f"s_and_b32 {sr(sCB)}, {sr(sH)}, 7")
    if CBX: g(f"s_xor_b32 {sr(sCB)}, {sr(sCB)}, {CBX}")
    g(f"s_lshr_b32 {sr(sKQ)}, {sr(sH)}, 3")
    g(f"s_lshr_b32 {sr(sBP)}, s2, 5")
    g(f"s_mov_b32 {sr(sSelLo)}, 0x05040100")
    g(f"s_mov_b32 {sr(sSelHi)}, 0x07060302")
    m, gg = vT0, vT1
    g(f"v_and_b32 {vr(m)}, 15, {vr(vLane)}")
    g(f"v_lshrrev_b32 {vr(gg)}, 4, {vr(vLane)}")
    g(f"v_bfe_u32 {vr(vK)}, {vr(vLane)}, 4, 1")
    g(f"v_lshlrev_b32 {vr(vK)}, 10, {vr(vK)}")
    g(f"v_bfe_u32 {vr(vK2)}, {vr(vLane)}, 2, 1")
    g(f"v_lshl_add_u32 {vr(vK)}, {vr(vK2)}, 9, {vr(vK)}")
    g(f"v_bfe_u32 {vr(vK2)}, {vr(vLane)}, 3, 1")
    g(f"v_lshl_add_u32 {vr(vK)}, {vr(vK2)}, 8, {vr(vK)}")
    g(f"v_lshrrev_b32 {vr(vK2)}, 5, {vr(vLane)}")
    g(f"v_lshl_add_u32 {vr(vK)}, {vr(vK2)}, 6, {vr(vK)}")
    g(f"v_and_b32 {vr(vK2)}, 3, {vr(vLane)}")
    g(f"v_lshl_add_u32 {vr(vK)}, {vr(vK2)}, 4, {vr(vK)}")
    g(f"v_add_u32 {vr(vK2)}, 0x1000, {vr(vK)}")
    g(f"v_lshlrev_b32 {vr(vV)}, 4, {vr(vLane)}")
    g(f"v_add_u32 {vr(vV2)}, 0x1000, {vr(vV)}")
    vWq, vX = vM_, vL
    g(f"v_lshlrev_b32 {vr(vWq)}, 16, {vr(gg)}")
    g(f"v_lshl_add_u32 {vr(vWq)}, {vr(m)}, 4, {vr(vWq)}")
    g(f"v_lshlrev_b32 {vr(vX)}, 11, {vr(m)}")
    g(f"v_lshl_add_u32 {vr(vX)}, {vr(gg)}, 4, {vr(vX)}")
    g(f"v_lshlrev_b32 {vr(vWo)}, 12, {vr(gg)}")
    g(f"v_lshl_add_u32 {vr(vWo)}, {vr(m)}, 4, {vr(vWo)}")
    for i in range(4): g(f"v_mov_b32 {vr(vO+i)}, -1")
    sXo, sWqB, sO0 = sT[4], sT[5], sT[6]
    g(f"s_lshl_b32 {sr(sXo)}, {sr(sBP)}, 15")
    g(f"s_lshl_b32 {sr(sT[1])}, {sr(sW)}, 8")
    g(f"s_add_u32 {sr(sXo)}, {sr(sXo)}, {sr(sT[1])}")
    g(f"s_lshl_b32 {sr(sT[1])}, {sr(sW)}, 20")
    g(f"s_lshl_b32 {sr(sT[2])}, {sr(sH)}, 8")
    g(f"s_add_u32 {sr(sWqB)}, {sr(sT[1])}, {sr(sT[2])}")
    g(f"s_lshl_b32 {sr(sT[1])}, {sr(sKQ)}, 3")
    g(f"s_add_u32 {sr(sT[1])}, {sr(sT[1])}, {sr(sW)}")
    g(f"s_lshl_b32 {sr(sT[1])}, {sr(sT[1])}, 18")
    g(f"s_lshl_b32 {sr(sT[2])}, {sr(sCB)}, 8")
    g(f"s_add_u32 {sr(sWoB)}, {sr(sT[1])}, {sr(sT[2])}")
    g(f"s_mul_i32 {sr(sLW)}, {sr(sW)}, {LWS}")
    g(f"s_add_u32 {sr(sLW)}, {sr(sLW)}, {LW}")
    g(f"s_lshl_b32 {sr(sT[2])}, {sr(sBP)}, 5")
    g(f"s_add_u32 {sr(sT[2])}, {sr(sT[2])}, {sr(sH)}")
    g(f"s_mul_i32 {sr(sMB)}, {sr(sT[2])}, {MBS}")
    g(f"s_lshl_b32 {sr(sT[2])}, {sr(sBP)}, 6")
    g(f"s_add_u32 {sr(sT[2])}, {sr(sT[2])}, {sr(sH)}")
    g(f"s_lshl_b32 {sr(sBase)}, {sr(sT[2])}, 19")
    g(f"s_lshl_b32 {sr(sT[2])}, {sr(sW)}, 13")
    g(f"s_add_u32 {sr(sBase)}, {sr(sBase)}, {sr(sT[2])}")
    g(f"s_lshl_b32 {sr(sRot)}, {sr(sBP)}, 16")
    g(f"s_add_u32 {sr(sNxt)}, {sr(sBase)}, {sr(sRot)}")
    g(f"s_mov_b32 {sr(sN)}, -1")
    advance(g)
    g(f"s_mov_b32 {sr(sO0)}, {sr(sCur)}")
    advance(g)
    g(f"s_mov_b32 {sr(sC)}, {f32bits(SCALE):#x}")
    g(f"s_mov_b32 {sr(sMask)}, 0x00ff00ff")
    g(f"s_mov_b32 {sr(sMask+1)}, 0x00ff00ff")
    g(f"s_mov_b32 {sr(sBI)}, 0")
    if PAR == "xcc":
        g(f"s_getreg_b32 {sr(sPar)}, hwreg(HW_REG_XCC_ID, 0, 1)")
    elif PAR == "slow":
        g(f"s_and_b32 {sr(sPar)}, {sr(sH)}, 3")
        g(f"s_cmp_eq_u32 {sr(sPar)}, 1")
        g(f"s_cselect_b32 {sr(sPar)}, 1, 0")
    elif PAR == "slow2":
        g(f"s_and_b32 {sr(sPar)}, {sr(sH)}, 1")
    elif PAR == "x157":
        g(f"s_getreg_b32 {sr(sPar)}, hwreg(HW_REG_XCC_ID, 0, 3)")
        g(f"s_lshr_b32 {sr(sPar)}, 0xa2, {sr(sPar)}")
        g(f"s_and_b32 {sr(sPar)}, {sr(sPar)}, 1")
    elif PAR == "wg":
        g(f"s_and_b32 {sr(sPar)}, s2, 1")
    else:
        g(f"s_mov_b32 {sr(sPar)}, 0")
    g(f"s_mov_b32 {sr(sPar+1)}, 0")
    g(f"s_mov_b64 vcc, {sr(sPar,2)}")
    if PRIO:
        g(f"s_cmp_lt_u32 {sr(sW)}, 4")
        g("s_cbranch_scc1 L_noprio")
        g(f"s_setprio {PRIO}")
        g.label("L_noprio")
    if DBG2: g("s_memrealtime s[94:95]")
    g("s_waitcnt lgkmcnt(0)")
    stamp(g, 0)
    srd(g, sX, 4, 262144)
    srd(g, sWQ, 10, 8388608)
    srd(g, sK, 6, 0x10000000)
    srd(g, sV, 8, 0x10000000)
    srd(g, sO, 18, 256 * MBS)
    stgA = [vD + 4 * i for i in range(8)]
    stgB = [232 + 4 * i for i in range(6)] + [vY, vY + 4]
    stg = [stgA, stgB]
    sQS = sOB
    def xload(s):
        if QROT:
            g(f"s_add_u32 {sr(sT[3])}, {sr(sBP)}, {s}")
            g(f"s_and_b32 {sr(sT[3])}, {sr(sT[3])}, 3")
            g(f"s_lshl_b32 {sr(sT[3])}, {sr(sT[3])}, 6")
            g(f"s_add_u32 {sr(sT[3])}, {sr(sT[3])}, {sr(sXo)}")
            g.vm(f"buffer_load_dwordx4 {vr(vQ+4*(s&1),4)}, {vr(vX)}, {sr(sX,4)}, {sr(sT[3])} offen", f"x{s}")
        else:
            g.vm(f"buffer_load_dwordx4 {vr(vQ+4*(s&1),4)}, {vr(vX)}, {sr(sX,4)}, {sr(sXo)} offen offset:{64*s}", f"x{s}")
    def wqload(s, i):
        if QROT:
            if i == 0:
                g(f"s_add_u32 {sr(sQS)}, {sr(sBP)}, {s}")
                g(f"s_and_b32 {sr(sQS)}, {sr(sQS)}, 3")
                g(f"s_lshl_b32 {sr(sQS)}, {sr(sQS)}, 18")
                g(f"s_add_u32 {sr(sQS)}, {sr(sQS)}, {sr(sWqB)}")
            g(f"s_add_u32 {sr(sT[3])}, {sr(sQS)}, {i*8192:#x}")
        else:
            g(f"s_add_u32 {sr(sT[3])}, {sr(sWqB)}, {(32*s+i)*8192:#x}")
        g.vm(f"buffer_load_dwordx4 {vr(stg[s&1][i],4)}, {vr(vWq)}, {sr(sWQ,4)}, {sr(sT[3])} offen nt", f"wq{s}")
    kv = [(None, kload(vKB, i, sO0), "K0") for i in range(8)] + [(None, vload(vVB, i, sO0), "V0") for i in range(8)] + \
         [(None, kload(vK1, i, sCur), "K1") for i in range(8)] + [(None, vload(vV1, i, sCur), "V1") for i in range(8)]
    for i in range(8):
        a, o = koffs(i)
        kv.append((1024 * i - o, f"buffer_load_dwordx4 {vr(a)}, {sr(sK,4)}, {sr(sNxt)} offen offset:{o} nt lds", "K2L"))
    for i in range(NLDS - 8):
        a, o = voffs(i)
        kv.append((8192 + 1024 * i - o, f"buffer_load_dwordx4 {vr(a)}, {sr(sV,4)}, {sr(sNxt)} offen offset:{o} nt lds", "V2L"))
    NKV = len(kv)
    def kvissue(k, thr=True):
        mo, s, tag = kv[k]
        if mo is not None:
            if mo >= 0: g(f"s_add_u32 m0, {sr(sLW)}, {mo}")
            else: g(f"s_sub_u32 m0, {sr(sLW)}, {-mo}")
        if thr: g.throttle(WQ)
        if mo is not None: g("s_nop 0")
        g.vm(s, tag)
    def qcomp(s):
        g.wait_tag(f"wq{s}"); g.wait_tag(f"x{s}")
        perm_mfma(g, stg[s & 1], vO, vQ + 4 * (s & 1), s == 0)
    xload(0); xload(1)
    kvi = 0
    NKV_IN = NKV - QTAIL
    for idx in range(32):
        s, i = idx // 8, idx % 8
        if i == 0 and s >= 2:
            qcomp(s - 2)
            xload(s)
        g.throttle(WQ)
        wqload(s, i)
        while kvi < (idx + 1) * NKV_IN // 32:
            kvissue(kvi); kvi += 1
        if idx == CLRAT and not NOCLR:
            if HALFCLR:
                g(f"s_cmp_lt_u32 {sr(sW)}, 4")
                g("s_cbranch_scc1 L_skipclr")
            g(f"s_lshl_b32 {sr(sT[1])}, {sr(sW)}, 10")
            g(f"s_add_u32 {sr(sT[1])}, {sr(sT[1])}, {sr(sMB)}")
            g.vm(f"buffer_store_dwordx4 {vr(vO,4)}, {vr(vV)}, {sr(sO,4)}, {sr(sT[1])} offen{CLR}", "clr")
            g(f"s_lshl_b32 {sr(sT[1])}, {sr(sW)}, 9")
            g(f"s_add_u32 {sr(sT[1])}, {sr(sT[1])}, {sr(sMB)}")
            g(f"s_add_u32 {sr(sT[1])}, {sr(sT[1])}, 8192")
            g("s_mov_b32 exec_hi, 0")
            g.vm(f"buffer_store_dwordx4 {vr(vO,4)}, {vr(vV)}, {sr(sO,4)}, {sr(sT[1])} offen{CLR}", "clr")
            if DYN:
                g("s_mov_b32 exec_lo, 1")
                g(f"s_add_u32 {sr(sT[1])}, {sr(sMB)}, {HDR}")
                g(f"s_lshl_b32 {sr(sT[2])}, {sr(sW)}, 4")
                g(f"s_add_u32 {sr(sT[1])}, {sr(sT[1])}, {sr(sT[2])}")
                g.vm(f"buffer_store_dwordx4 {vr(vO,4)}, off, {sr(sO,4)}, {sr(sT[1])}{CLR}", "clr")
                g("s_mov_b32 exec_lo, -1")
            g("s_mov_b32 exec_hi, -1")
            if HALFCLR:
                g.label("L_skipclr")
                g.q = [t for t in g.q if t != "clr"]
        if idx == 3:
            srd(g, sWO, 12, 8388608)
            srd(g, sOUT, 14, 262144)
            srd(g, sDBG, 16, 256)
    qcomp(2)
    half = kvi + (NKV - kvi) // 2
    while kvi < half:
        kvissue(kvi); kvi += 1
    qcomp(3)
    while kvi < NKV:
        kvissue(kvi, False); kvi += 1
    stamp(g, 1)
    if PRIO: g("s_setprio 0")
    vA = vY
    g(f"s_lshl_b32 {sr(sT[0])}, {sr(sW)}, 13")
    g(f"v_add_u32 {vr(vA)}, {sr(sT[0])}, {vr(vV)}")
    g("s_nop 7")
    for e in range(8):
        g(f"ds_write_b128 {vr(vA)}, {vr(vO+4*e,4)} offset:{QP + 1024*e}")
    g(f"s_lshl_b32 {sr(sT[0])}, {sr(sW)}, 10")
    g(f"v_add_u32 {vr(vA)}, {sr(sT[0])}, {vr(vV)}")
    g("s_waitcnt lgkmcnt(0)")
    g("s_barrier")
    for p in range(8):
        g(f"ds_read_b128 {vr(vO+4*p,4)}, {vr(vA)} offset:{QP + 8192*p}")
    g(f"v_and_b32 {vr(vT0)}, 15, {vr(vLane)}")
    g(f"v_lshrrev_b32 {vr(vT1)}, 4, {vr(vLane)}")
    g(f"v_mul_u32_u24 {vr(vA+1)}, {QFS}, {vr(vT0)}")
    g(f"v_lshl_add_u32 {vr(vA+1)}, {vr(vT1)}, 6, {vr(vA+1)}")
    g(f"s_lshl_b32 {sr(sT[0])}, {sr(sW)}, 1")
    g(f"s_add_u32 {sr(sT[0])}, {sr(sT[0])}, {QF}")
    g(f"v_add_u32 {vr(vA+1)}, {sr(sT[0])}, {vr(vA+1)}")
    g("s_waitcnt lgkmcnt(0)")
    for p in (4, 2, 1):
        for q in range(p):
            for r in range(4):
                g(f"v_add_f32 {vr(vO+4*q+r)}, {vr(vO+4*q+r)}, {vr(vO+4*(q+p)+r)}")
    g(f"v_cvt_pk_bf16_f32 {vr(vO+4)}, {vr(vO)}, {vr(vO+1)}")
    g(f"v_cvt_pk_bf16_f32 {vr(vO+5)}, {vr(vO+2)}, {vr(vO+3)}")
    g(f"ds_write_b16 {vr(vA+1)}, {vr(vO+4)} offset:0")
    g(f"ds_write_b16_d16_hi {vr(vA+1)}, {vr(vO+4)} offset:16")
    g(f"ds_write_b16 {vr(vA+1)}, {vr(vO+5)} offset:32")
    g(f"ds_write_b16_d16_hi {vr(vA+1)}, {vr(vO+5)} offset:48")
    g("s_waitcnt lgkmcnt(0)")
    g("s_barrier")
    load_qfrag(g)
    reset_state(g)
    advance(g)
    g(f"s_mul_i32 {sr(sGB)}, {sr(sBP)}, {32*MBS}")
    if MULTI:
        g(f"s_cmp_eq_u32 {sr(sPar)}, 0")
        g(f"s_cselect_b32 {sr(sLvl)}, {LV.index(WA)}, {LV.index(WB)}")
    g(f"v_add_u32 {vr(vX4)}, {sr(sLW)}, {vr(vV)}")
    g("s_waitcnt lgkmcnt(0)")
    stamp(g, 2)
    g.wait_tag("K0"); qk(g, vKB)
    for i in range(3): g.vm(kload(vKB, i, sNxt), "K3")
    g(f"s_cmp_lg_u32 {sr(sW)}, 7")
    g("s_cbranch_scc1 L_nosig")
    g(f"s_lshl_b32 {sr(sT[2])}, {sr(sBP)}, 5")
    g(f"v_mov_b32 {vr(vT0)}, 1")
    g("s_mov_b64 exec, 1")
    g(f"buffer_atomic_add {vr(vT0)}, off, {sr(sDBG,4)}, {sr(sT[2])} sc1")
    g("s_mov_b64 exec, -1")
    g.label("L_nosig")
    sm1(g); sm2(g)
    g.wait_tag("V0"); pv(g, vVB)
    NV = NLDS - 8
    for i in range(NV, 8): g.vm(vload(vVB, i, sCur), "V2")
    g.wait_tag("K1"); qk(g, vK1)
    g.wait_tag("V2L"); g.wait_tag("K2L")
    for i in range(8):
        g(f"ds_read_b128 {vr(vK1+4*i,4)}, {vr(vX4)} offset:{1024*i}")
    for i in range(NV):
        g(f"ds_read_b128 {vr(vVB+4*i,4)}, {vr(vX4)} offset:{8192+1024*i}")
    for i in range(3, 6): g.vm(kload(vKB, i, sNxt), "K3")
    sm1(g); sm2(g)
    pv(g, vV1)
    for i in range(6, 8): g.vm(kload(vKB, i, sNxt), "K3")
    g("s_waitcnt lgkmcnt(0)")
    qk(g, vK1)
    sm1(g); sm2(g)
    g.wait_tag("V2"); pv(g, vVB)
    stamp(g, 3)
    def cnt(full, pos, Wn):
        c = 0; k = 0; p = pos - 1
        while True:
            if full[p] == "K":
                k += 1
                if k == Wn: return c
            c += 1; p -= 1
    g.label("L_xtop")
    advance(g)
    sWS = sOB
    if WROT: g(f"s_add_u32 {sr(sWS)}, {sr(sN)}, {sr(sBP)}")
    else: g(f"s_mov_b32 {sr(sWS)}, {sr(sN)}")
    g(f"s_add_u32 {sr(sWS)}, {sr(sWS)}, 1")
    g(f"s_and_b32 {sr(sWS)}, {sr(sWS)}, 3")
    g(f"s_lshl_b32 {sr(sWS)}, {sr(sWS)}, 16")
    g(f"s_add_u32 {sr(sWS)}, {sr(sWS)}, {sr(sWoB)}")
    seq = ["K"] * 8
    for i in range(8):
        dwait(g, cnt(seq, len(seq), WA), cnt(seq, len(seq), WB))
        g(vload(vVB, i, sCur)); seq.append("K")
        if not NOW:
            g(f"s_add_u32 m0, {sr(sLW)}, {1024*i}")
            g(f"s_add_u32 {sr(sT[3])}, {sr(sWS)}, {(8*(i&3) + (i>>2))*2048:#x}")
            g(f"buffer_load_dwordx4 {vr(vWo)}, {sr(sWO,4)}, {sr(sT[3])} offen nt lds"); seq.append("X")
        if i == WB - 1: qk(g, vKB)
        if i == WB: sm1(g)
        if i == WB + 1: sm2(g)
    for i in range(8):
        dwait(g, cnt(seq, len(seq), WA), cnt(seq, len(seq), WB))
        g(kload(vKB, i, sNxt)); seq.append("K")
        if i == WB - 1: pv(g, vVB)
    for i in range(8):
        g(f"ds_read_b128 {vr(vD+4*i,4)}, {vr(vX4)} offset:{1024*i}")
    rows = [vD + 4 * i for i in range(8)]
    g(f"s_cmp_eq_u32 {sr(sN)}, 4")
    g("s_cbranch_scc1 L_s1")
    g(f"s_cmp_eq_u32 {sr(sN)}, 5")
    g("s_cbranch_scc1 L_s2")
    g(f"s_cmp_eq_u32 {sr(sN)}, 6")
    g("s_cbranch_scc1 L_s3")
    g("s_waitcnt lgkmcnt(0)")
    for e in range(8): perm4(g, vSP + 4 * e, rows, e)
    g("s_branch L_xtop")
    g.label("L_s1")
    g("s_waitcnt lgkmcnt(0)")
    for e in range(8): perm4(g, vSP + 32 + 4 * e, rows, e)
    g("s_branch L_xtop")
    g.label("L_s2")
    g("s_waitcnt lgkmcnt(0)")
    for e in range(5): perm4(g, vSP + 64 + 4 * e, rows, e)
    for e in range(5, 8): perm4(g, vY + 4 * (e - 5), rows, e)
    for e in range(5, 8): g(f"ds_write_b128 {vr(vX4)}, {vr(vY+4*(e-5),4)} offset:{8192+1024*(e-5)}")
    g("s_waitcnt lgkmcnt(0)")
    g("s_branch L_xtop")
    g.label("L_s3")
    g("s_waitcnt lgkmcnt(0)")
    for hf in range(2):
        for e in range(4): perm4(g, vY + 4 * e, rows, 4 * hf + e)
        for e in range(4): g(f"ds_write_b128 {vr(vX4)}, {vr(vY+4*e,4)} offset:{1024*(4*hf+e)}")
        g("s_waitcnt lgkmcnt(0)")
    stamp(g, 12)
    g.label("L_top")
    advance(g)
    for i in range(8):
        mwait(g)
        g(vload(vVB, i, sCur))
        if i == WM - 1:
            g.label("L_qk")
            qk(g, vKB)
        if i == WM: sm1(g)
        if i == WM + 1: sm2(g)
    g(f"s_cmp_eq_u32 {sr(sN)}, 15")
    g("s_cbranch_scc1 L_last")
    for i in range(WM):
        mwait(g)
        g(kload(vKB, i, sNxt))
    g.label("L_pv")
    pv(g, vVB)
    g(f"s_and_b32 {sr(sT[0])}, {sr(sN)}, 7")
    g(f"s_cmp_eq_u32 {sr(sT[0])}, 7")
    g("s_cbranch_scc1 L_hookC")
    g(f"s_cmp_eq_u32 {sr(sN)}, {OPB}")
    g("s_cbranch_scc1 L_hookO")
    g(f"s_cmp_eq_u32 {sr(sN)}, {OPF}")
    g("s_cbranch_scc1 L_hookF")
    g.label("L_krest")
    for i in range(WM, 8):
        mwait(g)
        g(kload(vKB, i, sNxt))
    g("s_branch L_top")
    g.label("L_last")
    g("s_waitcnt vmcnt(0)")
    g("s_branch L_pv")
    def preissue():
        for i in range(WM, 8): g(kload(vKB, i, sNxt))
        advance(g)
        for i in range(WM): g(vload(vVB, i, sCur))
    def back_to_qk():
        g(f"s_mov_b64 vcc, {sr(sPar,2)}")
        g(f"s_waitcnt vmcnt({WM})")
        g("s_branch L_qk")
    g.label("L_hookC")
    stamp_sel(g, 4, sBI)
    g(f"s_cmp_eq_u32 {sr(sBI)}, 1")
    g("s_cbranch_scc1 L_hookC2")
    preissue()
    g.label("L_hookC2")
    if DBG2:
        g("s_memrealtime s[76:77]")
        g("s_waitcnt lgkmcnt(0)")
        g("s_mov_b32 s91, s76")
    xlane(g, vL, vT1, "v_add_f32")
    vA = vY
    g(f"s_lshl_b32 {sr(sT[0])}, {sr(sW)}, 12")
    if CB: g(f"s_add_u32 {sr(sT[0])}, {sr(sT[0])}, {CB}")
    swz_write(g, sT[0], vO, vA)
    g(f"s_lshl_b32 {sr(sT[0])}, {sr(sW)}, 2")
    g(f"s_add_u32 {sr(sT[0])}, {sr(sT[0])}, {ML}")
    g(f"v_lshlrev_b32 {vr(vA+4)}, 6, {vr(vT0)}")
    g(f"v_add_u32 {vr(vA+4)}, {sr(sT[0])}, {vr(vA+4)}")
    g(f"s_mov_b64 exec, {sr(sMask,2)}")
    for e in range(8):
        g(f"ds_write_b128 {vr(vA+(e>>1))}, {vr(vO+4*e,4)} offset:{16*(e&1)}")
    g("s_mov_b64 exec, 0xff")
    g(f"ds_write_b32 {vr(vA+4)}, {vr(vM_)}")
    g(f"ds_write_b32 {vr(vA+4)}, {vr(vL)} offset:32")
    g("s_mov_b64 exec, -1")
    g(f"v_bfe_u32 {vr(vT0)}, {vr(vLane)}, 2, 3")
    g(f"v_lshlrev_b32 {vr(vA+5)}, 6, {vr(vT0)}")
    g(f"v_add_u32 {vr(vA+5)}, {ML}, {vr(vA+5)}")
    g(f"v_lshrrev_b32 {vr(vT1)}, 5, {vr(vLane)}")
    g(f"v_xor_b32 {vr(vT1)}, {vr(vT1)}, {vr(vT0)}")
    g(f"v_lshlrev_b32 {vr(vT1)}, 5, {vr(vT1)}")
    g(f"s_lshl_b32 {sr(sT[0])}, {sr(sW)}, 6")
    g(f"v_xor_b32 {vr(vT1)}, {sr(sT[0])}, {vr(vT1)}")
    g(f"v_lshl_add_u32 {vr(vA+6)}, {vr(vT0)}, 9, {vr(vT1)}")
    g(f"v_and_b32 {vr(vT0)}, 3, {vr(vLane)}")
    g(f"v_lshl_add_u32 {vr(vA+6)}, {vr(vT0)}, 3, {vr(vA+6)}")
    g("s_waitcnt lgkmcnt(0)")
    g("s_barrier")
    mm = vD
    for i in range(4):
        g(f"ds_read_b128 {vr(mm+4*i,4)}, {vr(vA+5)} offset:{16*i}")
    for p in range(8):
        g(f"ds_read_b64 {vr(vO+2*p,2)}, {vr(vA+6)} offset:{CB + 4096*p}")
    g(f"s_lshl_b32 {sr(sT[0])}, {sr(sBI)}, 11")
    g(f"s_add_u32 {sr(sT[0])}, {sr(sT[0])}, {sr(sMB)}")
    g(f"s_lshl_b32 {sr(sT[1])}, {sr(sW)}, 8")
    g(f"s_add_u32 {sr(sT[0])}, {sr(sT[0])}, {sr(sT[1])}")
    g(f"s_add_u32 {sr(sT[0])}, {sr(sT[0])}, 8192")
    g(f"v_lshlrev_b32 {vr(vA+2)}, 2, {vr(vLane)}")
    g("s_waitcnt lgkmcnt(8)")
    g(f"v_max3_f32 {vr(vT0)}, {vr(mm)}, {vr(mm+1)}, {vr(mm+2)}")
    g(f"v_max3_f32 {vr(vT1)}, {vr(mm+3)}, {vr(mm+4)}, {vr(mm+5)}")
    g(f"v_max3_f32 {vr(vT0)}, {vr(vT0)}, {vr(mm+6)}, {vr(mm+7)}")
    g(f"v_max_f32 {vr(vT0)}, {vr(vT0)}, {vr(vT1)}")
    for p in range(8):
        g(f"v_sub_f32 {vr(mm+p)}, {vr(mm+p)}, {vr(vT0)}")
    for p in range(8):
        g(f"v_exp_f32 {vr(mm+p)}, {vr(mm+p)}")
    g("s_nop 0")
    g(f"v_mul_f32 {vr(vT1)}, {vr(mm)}, {vr(mm+8)}")
    for p in range(1, 8):
        g(f"v_fmac_f32 {vr(vT1)}, {vr(mm+p)}, {vr(mm+8+p)}")
    g(f"v_rcp_f32 {vr(vT1)}, {vr(vT1)}")
    g("s_waitcnt lgkmcnt(0)")
    R0, R1 = vP, vP + 1
    g(f"v_mul_f32 {vr(R0)}, {vr(mm)}, {vr(vO)}")
    g(f"v_mul_f32 {vr(R1)}, {vr(mm)}, {vr(vO+1)}")
    for p in range(1, 8):
        g(f"v_fmac_f32 {vr(R0)}, {vr(mm+p)}, {vr(vO+2*p)}")
        g(f"v_fmac_f32 {vr(R1)}, {vr(mm+p)}, {vr(vO+2*p+1)}")
    g(f"v_mul_f32 {vr(R0)}, {vr(R0)}, {vr(vT1)}")
    g(f"v_mul_f32 {vr(R1)}, {vr(R1)}, {vr(vT1)}")
    g(f"v_cvt_pk_bf16_f32 {vr(R0)}, {vr(R0)}, {vr(R1)}")
    g(f"v_min_u32 {vr(R0)}, -2, {vr(R0)}")
    g(f"s_mov_b32 {sr(sT[3])}, 0x11111111")
    g(f"s_mov_b32 {sr(sT[4])}, 0x11111111")
    for k in range(1, 4):
        g(f"v_mov_b32_dpp {vr(vP+k)}, {vr(R0)} quad_perm:[{k},{k},{k},{k}] row_mask:0xf bank_mask:0xf")
    g(f"s_mov_b64 exec, {sr(sT[3],2)}")
    g(f"buffer_store_dwordx4 {vr(vP,4)}, {vr(vA+2)}, {sr(sO,4)}, {sr(sT[0])} offen{MST}")
    g("s_mov_b64 exec, -1")
    stamp_sel(g, 6, sBI)
    g(f"s_cmp_eq_u32 {sr(sBI)}, 1")
    g(f"s_mov_b32 {sr(sOB)}, 1")
    g("s_cbranch_scc1 L_hookO2")
    g(f"s_mov_b32 {sr(sBI)}, 1")
    if DYN: g("s_memrealtime s[76:77]")
    load_qfrag(g)
    reset_state(g)
    g("s_waitcnt lgkmcnt(0)")
    if DYN:
        g(f"s_min_u32 {sr(sTH)}, s76, -2")
        g(f"s_cmp_lg_u32 {sr(sW)}, 0")
        g("s_cbranch_scc1 L_nots")
        g(f"v_mov_b32 {vr(vT0)}, {sr(sTH)}")
        g(f"s_add_u32 {sr(sT[2])}, {sr(sMB)}, {HDR}")
        g("s_mov_b64 exec, 1")
        g(f"buffer_store_dword {vr(vT0)}, off, {sr(sO,4)}, {sr(sT[2])}{MST}")
        g("s_mov_b64 exec, -1")
        g.label("L_nots")
    g(f"s_lshl_b32 {sr(sT[2])}, {sr(sBP)}, 5")
    g(f"s_load_dword {sr(sHS)}, s[16:17], {sr(sT[2])}")
    g(f"s_mov_b64 vcc, {sr(sPar,2)}")
    g(f"s_waitcnt vmcnt({WM+1})")
    g("s_branch L_qk")
    g.label("L_hookO")
    preissue()
    g(f"s_mov_b32 {sr(sOB)}, 0")
    g("s_waitcnt lgkmcnt(0)")
    g(f"s_cmp_ge_u32 {sr(sHS)}, 32")
    g("s_cbranch_scc1 L_hookO2")
    g(f"s_lshl_b32 {sr(sT[2])}, {sr(sBP)}, 5")
    g(f"s_mov_b32 {sr(sT[4])}, 0")
    g.label("L_hspoll")
    g(f"buffer_load_dword {vr(vT0)}, off, {sr(sDBG,4)}, {sr(sT[2])} sc1")
    g("s_waitcnt vmcnt(0)")
    g(f"v_readfirstlane_b32 {sr(sT[5])}, {vr(vT0)}")
    g(f"s_add_u32 {sr(sT[4])}, {sr(sT[4])}, 1")
    g(f"s_cmp_ge_u32 {sr(sT[5])}, 32")
    g("s_cbranch_scc1 L_hookO2")
    g(f"s_cmp_ge_u32 {sr(sT[4])}, 0x20000")
    g("s_cbranch_scc1 L_hookO2")
    g("s_sleep 8")
    g("s_branch L_hspoll")
    g.label("L_hookO2")
    g(f"s_lshl_b32 {sr(sT[1])}, {sr(sKQ)}, 3")
    g(f"s_add_u32 {sr(sT[1])}, {sr(sT[1])}, {sr(sW)}")
    g(f"s_mul_i32 {sr(sT[1])}, {sr(sT[1])}, {MBS}")
    g(f"s_add_u32 {sr(sT[1])}, {sr(sT[1])}, {sr(sGB)}")
    if DYN == 1: g(f"s_add_u32 {sr(sT[6])}, {sr(sT[1])}, {HDR}")
    if DYN == 2:
        g(f"s_and_b32 {sr(sT[6])}, {sr(sH)}, 3")
        g(f"s_lshl_b32 {sr(sT[2])}, {sr(sW)}, 2")
        g(f"s_add_u32 {sr(sT[6])}, {sr(sT[6])}, {sr(sT[2])}")
        g(f"s_mul_i32 {sr(sT[6])}, {sr(sT[6])}, {MBS}")
        g(f"s_add_u32 {sr(sT[6])}, {sr(sT[6])}, {sr(sGB)}")
        g(f"s_add_u32 {sr(sT[6])}, {sr(sT[6])}, {HDR}")
    g(f"s_lshl_b32 {sr(sT[2])}, {sr(sOB)}, 11")
    g(f"s_add_u32 {sr(sT[1])}, {sr(sT[1])}, {sr(sT[2])}")
    g(f"s_add_u32 {sr(sT[1])}, {sr(sT[1])}, 8192")
    g(f"v_and_b32 {vr(vT0)}, 7, {vr(vLane)}")
    g(f"v_lshrrev_b32 {vr(vT1)}, 4, {vr(vLane)}")
    g(f"v_lshlrev_b32 {vr(vT1)}, 7, {vr(vT1)}")
    g(f"v_lshl_add_u32 {vr(vAl)}, {vr(vT0)}, 4, {vr(vT1)}")
    Bf = [vY, vY + 4, vVt, vVt + 4]
    LT = [vP, vQ, vQ + 4, vX4]
    g(f"v_mov_b32 {vr(vMn)}, {vr(vX4)}")
    lf = [(2, e, 8192 + 1024 * (e - 5)) for e in range(5, 8)] + [(3, e, 1024 * e) for e in range(8)]
    def ldsread(k): g(f"ds_read_b128 {vr(LT[k % 4],4)}, {vr(vMn)} offset:{lf[k][2]}")
    for k in range(4): ldsread(k)
    g(f"s_mov_b32 {sr(sT[4])}, 0")
    bo = [sT[0], sT[2], sT[3], sT[5]]
    for s in range(4):
        if WROT:
            g(f"s_add_u32 {sr(bo[s])}, {sr(sBP)}, {s}")
            g(f"s_and_b32 {sr(bo[s])}, {sr(bo[s])}, 3")
            g(f"s_lshl_b32 {sr(bo[s])}, {sr(bo[s])}, 9")
            g(f"s_add_u32 {sr(bo[s])}, {sr(bo[s])}, {sr(sT[1])}")
        else:
            g(f"s_add_u32 {sr(bo[s])}, {sr(sT[1])}, {512*s}")
    g.label("L_poll")
    for s in range(4):
        g(f"buffer_load_dwordx4 {vr(Bf[s],4)}, {vr(vAl)}, {sr(sO,4)}, {sr(bo[s])} offen{MLD}")
    if DYN: g(f"buffer_load_dword {vr(vWo)}, off, {sr(sO,4)}, {sr(sT[6])}{MLD}")
    g("s_waitcnt vmcnt(0)")
    g(f"v_max3_u32 {vr(vT0)}, {vr(vY)}, {vr(vY+1)}, {vr(vY+2)}")
    if DYN == 1: g(f"v_max_u32 {vr(vT0)}, {vr(vT0)}, {vr(vWo)}")
    g(f"v_max3_u32 {vr(vT1)}, {vr(vY+3)}, {vr(vY+4)}, {vr(vY+5)}")
    for k in range(6, 16, 4):
        g(f"v_max3_u32 {vr(vT0)}, {vr(vT0)}, {vr(vY+k)}, {vr(vY+k+1)}")
        if k + 3 < 16: g(f"v_max3_u32 {vr(vT1)}, {vr(vT1)}, {vr(vY+k+2)}, {vr(vY+k+3)}")
    g(f"v_max_u32 {vr(vT0)}, {vr(vT0)}, {vr(vT1)}")
    g(f"v_cmp_eq_u32 vcc, -1, {vr(vT0)}")
    g("s_cbranch_vccz L_polled")
    g(f"s_add_u32 {sr(sT[4])}, {sr(sT[4])}, 1")
    g(f"s_cmp_ge_u32 {sr(sT[4])}, 0x20000")
    g("s_cbranch_scc1 L_polled")
    g("s_sleep 1")
    g("s_branch L_poll")
    g.label("L_polled")
    stamp_sel(g, 8, sOB)
    rf = [(0, e, vSP + 4 * e) for e in range(8)] + [(1, e, vSP + 32 + 4 * e) for e in range(8)] + [(2, e, vSP + 64 + 4 * e) for e in range(5)]
    def mf(s, e, a):
        acc = vD + 4 * e
        c = "0" if s == 0 else vr(acc, 4)
        g(f"v_mfma_f32_16x16x32_bf16 {vr(acc,4)}, {vr(a,4)}, {vr(Bf[s],4)}, {c}")
    for k in range(8): mf(*rf[k])
    ri = 8
    nissued = 4
    for k in range(len(lf)):
        outstanding = nissued - k - 1
        g(f"s_waitcnt lgkmcnt({outstanding})")
        mf(lf[k][0], lf[k][1], LT[k % 4])
        if ri < len(rf): mf(*rf[ri]); ri += 1
        else: g("s_nop 1")
        if nissued < len(lf):
            ldsread(nissued); nissued += 1
    while ri < len(rf): mf(*rf[ri]); ri += 1
    g(f"v_mov_b32 {vr(vX4)}, {vr(vMn)}")
    vA = vY
    g(f"s_lshl_b32 {sr(sT[0])}, {sr(sW)}, 12")
    g(f"s_add_u32 {sr(sT[0])}, {sr(sT[0])}, {RB}")
    swz_write(g, sT[0], vD, vA)
    g(f"v_lshrrev_b32 {vr(vT1)}, 4, {vr(vLane)}")
    g(f"s_and_b32 {sr(sT[0])}, {sr(sW)}, 1")
    g(f"s_lshl_b32 {sr(sT[0])}, {sr(sT[0])}, 2")
    g(f"v_add_u32 {vr(vT1)}, {sr(sT[0])}, {vr(vT1)}")
    g(f"v_and_b32 {vr(vA+4)}, 3, {vr(vLane)}")
    g(f"v_xor_b32 {vr(vA+4)}, {vr(vA+4)}, {vr(vT1)}")
    g(f"v_lshlrev_b32 {vr(vA+4)}, 5, {vr(vA+4)}")
    g(f"s_lshr_b32 {sr(sT[0])}, {sr(sW)}, 1")
    g(f"s_lshl_b32 {sr(sT[0])}, {sr(sT[0])}, 7")
    g(f"v_xor_b32 {vr(vA+4)}, {sr(sT[0])}, {vr(vA+4)}")
    g(f"v_lshl_add_u32 {vr(vA+4)}, {vr(vT1)}, 9, {vr(vA+4)}")
    g(f"v_and_b32 {vr(vT1)}, 12, {vr(vLane)}")
    g(f"v_add_u32 {vr(vA+4)}, {vr(vT1)}, {vr(vA+4)}")
    g(f"s_mov_b64 exec, {sr(sMask,2)}")
    for e in range(8):
        g(f"ds_write_b128 {vr(vA+(e>>1))}, {vr(vD+4*e,4)} offset:{16*(e&1)}")
    if DYN == 2:
        g(f"s_add_u32 {sr(sT[0])}, {sr(sTH)}, 500")
        g(f"v_mov_b32 {vr(vT0)}, {sr(sT[0])}")
        g(f"v_cmp_eq_u32 vcc, -1, {vr(vWo)}")
        g(f"v_cndmask_b32 {vr(vWo)}, {vr(vWo)}, {vr(vT0)}, vcc")
    if DYN:
        g(f"s_lshl_b32 {sr(sT[0])}, {sr(sW)}, 2")
        g(f"s_add_u32 {sr(sT[0])}, {sr(sT[0])}, {TS}")
        g(f"v_mov_b32 {vr(vT0)}, {sr(sT[0])}")
        g("s_mov_b64 exec, 1")
        g(f"ds_write_b32 {vr(vT0)}, {vr(vWo)}")
    g("s_mov_b64 exec, -1")
    g(f"s_lshl_b32 {sr(sT[0])}, {sr(sOB)}, 12")
    g(f"s_add_u32 {sr(sT[0])}, {sr(sT[0])}, {sr(sMB)}")
    g(f"s_lshl_b32 {sr(sT[1])}, {sr(sW)}, 9")
    g(f"s_add_u32 {sr(sT[0])}, {sr(sT[0])}, {sr(sT[1])}")
    g(f"v_lshlrev_b32 {vr(vA+5)}, 3, {vr(vLane)}")
    g(f"s_mov_b32 {sr(sT[3])}, 0x55555555")
    g(f"s_mov_b32 {sr(sT[4])}, 0x55555555")
    g("s_waitcnt lgkmcnt(0)")
    g("s_barrier")
    U = vD
    for p in range(8):
        g(f"ds_read_b32 {vr(U+2*p)}, {vr(vA+4)} offset:{RB + 4096*p}")
        g(f"ds_read_b32 {vr(U+2*p+1)}, {vr(vA+4)} offset:{RB + 4096*p + 16}")
    g("s_waitcnt lgkmcnt(0)")
    for p in (4, 2, 1):
        for q in range(p):
            for u in range(2):
                g(f"v_add_f32 {vr(U+2*q+u)}, {vr(U+2*q+u)}, {vr(U+2*(q+p)+u)}")
    g(f"v_min_u32 {vr(U)}, -2, {vr(U)}")
    g(f"v_min_u32 {vr(U+1)}, -2, {vr(U+1)}")
    g("s_nop 1")
    g(f"v_mov_b32_dpp {vr(U+2)}, {vr(U)} quad_perm:[1,1,3,3] row_mask:0xf bank_mask:0xf")
    g(f"v_mov_b32_dpp {vr(U+3)}, {vr(U+1)} quad_perm:[1,1,3,3] row_mask:0xf bank_mask:0xf")
    g(f"s_mov_b64 exec, {sr(sT[3],2)}")
    g(f"buffer_store_dwordx4 {vr(U,4)}, {vr(vA+5)}, {sr(sO,4)}, {sr(sT[0])} offen{MST}")
    g("s_mov_b64 exec, -1")
    stamp_sel(g, 10, sOB)
    g(f"s_cmp_eq_u32 {sr(sOB)}, 1")
    g("s_cbranch_scc1 L_hookF2")
    load_qfrag(g)
    if DYN:
        g(f"v_mov_b32 {vr(vT1)}, {TS}")
        g(f"ds_read_b128 {vr(vY,4)}, {vr(vT1)}")
        g(f"ds_read_b128 {vr(vY+4,4)}, {vr(vT1)} offset:16")
    g("s_waitcnt lgkmcnt(0)")
    if DYN:
        g(f"v_add3_u32 {vr(vY)}, {vr(vY)}, {vr(vY+1)}, {vr(vY+2)}")
        g(f"v_add3_u32 {vr(vY+3)}, {vr(vY+3)}, {vr(vY+4)}, {vr(vY+5)}")
        g(f"v_add3_u32 {vr(vY)}, {vr(vY)}, {vr(vY+6)}, {vr(vY+7)}")
        g(f"v_add_u32 {vr(vY)}, {vr(vY)}, {vr(vY+3)}")
        g("s_nop 0")
        g(f"v_readfirstlane_b32 {sr(sT[0])}, {vr(vY)}")
        g(f"s_lshl_b32 {sr(sT[1])}, {sr(sTH)}, 3")
        g(f"s_sub_u32 {sr(sT[1])}, {sr(sT[1])}, {sr(sT[0])}")
        if MULTI and DYN == 2:
            for k, th in enumerate(LT_):
                g(f"s_cmp_gt_i32 {sr(sT[1])}, {8*th}")
                g(f"s_addc_u32 {sr(sLvl)}, {sr(sLvl)}, 0")
            g(f"s_min_u32 {sr(sLvl)}, {sr(sLvl)}, {len(LV)-1}")
        elif MULTI:
            g(f"s_mov_b32 {sr(sLvl)}, 0")
            for k, th in enumerate(LT_):
                g(f"s_cmp_gt_i32 {sr(sT[1])}, {8*th}")
                g(f"s_cselect_b32 {sr(sLvl)}, {k+1}, {sr(sLvl)}")
            if DBG:
                g(f"s_mul_i32 {sr(sT[0])}, {sr(sLvl)}, 100")
                g(f"s_add_u32 {sr(sSt+15)}, {sr(sSt)}, {sr(sT[0])}")
        else:
            g(f"s_cmp_gt_i32 {sr(sT[1])}, {8*DTH}")
            g(f"s_cselect_b32 {sr(sPar)}, 1, 0")
    g(f"s_mov_b64 vcc, {sr(sPar,2)}")
    g("s_branch L_qk")
    g.label("L_hookF")
    g(f"s_cmp_lg_u32 {sr(sW)}, 0")
    g("s_cbranch_scc1 L_krest")
    preissue()
    g.label("L_hookF2")
    g(f"s_cmp_lg_u32 {sr(sW)}, 0")
    g("s_cbranch_scc1 L_fin")
    g(f"s_and_b32 {sr(sT[1])}, {sr(sH)}, 7")
    g(f"s_mul_i32 {sr(sT[1])}, {sr(sT[1])}, {MBS}")
    g(f"s_add_u32 {sr(sT[1])}, {sr(sT[1])}, {sr(sGB)}")
    g(f"s_lshl_b32 {sr(sT[2])}, {sr(sOB)}, 12")
    g(f"s_add_u32 {sr(sT[1])}, {sr(sT[1])}, {sr(sT[2])}")
    g(f"s_lshl_b32 {sr(sT[2])}, {sr(sKQ)}, 10")
    g(f"s_add_u32 {sr(sT[1])}, {sr(sT[1])}, {sr(sT[2])}")
    g(f"s_add_u32 {sr(sT[2])}, {sr(sT[1])}, {8*MBS}")
    g(f"s_add_u32 {sr(sT[3])}, {sr(sT[1])}, {16*MBS}")
    g(f"s_add_u32 {sr(sT[5])}, {sr(sT[1])}, {24*MBS}")
    g(f"s_lshl_b32 {sr(sT[0])}, {sr(sBP)}, 1")
    g(f"s_add_u32 {sr(sT[0])}, {sr(sT[0])}, {sr(sOB)}")
    g(f"s_lshl_b32 {sr(sT[0])}, {sr(sT[0])}, 14")
    g(f"s_lshl_b32 {sr(sT[6])}, {sr(sCB)}, 8")
    g(f"s_add_u32 {sr(sT[0])}, {sr(sT[0])}, {sr(sT[6])}")
    g(f"s_lshl_b32 {sr(sT[6])}, {sr(sKQ)}, 6")
    g(f"s_add_u32 {sr(sT[0])}, {sr(sT[0])}, {sr(sT[6])}")
    g(f"v_lshrrev_b32 {vr(vAl)}, 3, {vr(vLane)}")
    g(f"v_and_b32 {vr(vT1)}, 7, {vr(vLane)}")
    g(f"v_lshlrev_b32 {vr(vAl)}, 11, {vr(vAl)}")
    g(f"v_lshl_add_u32 {vr(vAl)}, {vr(vT1)}, 3, {vr(vAl)}")
    g(f"s_mov_b32 {sr(sT[4])}, 0")
    g.label("L_fpoll")
    for ks, so in enumerate([sT[1], sT[2], sT[3], sT[5]]):
        g(f"buffer_load_dwordx4 {vr(vY+4*ks,4)}, {vr(vV)}, {sr(sO,4)}, {sr(so)} offen{MLD}")
    g("s_waitcnt vmcnt(0)")
    g(f"v_max3_u32 {vr(vT0)}, {vr(vY)}, {vr(vY+1)}, {vr(vY+2)}")
    g(f"v_max3_u32 {vr(vT1)}, {vr(vY+3)}, {vr(vY+4)}, {vr(vY+5)}")
    for k in range(6, 16, 4):
        g(f"v_max3_u32 {vr(vT0)}, {vr(vT0)}, {vr(vY+k)}, {vr(vY+k+1)}")
        if k + 3 < 16: g(f"v_max3_u32 {vr(vT1)}, {vr(vT1)}, {vr(vY+k+2)}, {vr(vY+k+3)}")
    g(f"v_max_u32 {vr(vT0)}, {vr(vT0)}, {vr(vT1)}")
    g(f"v_cmp_eq_u32 vcc, -1, {vr(vT0)}")
    g("s_cbranch_vccz L_fpolled")
    g(f"s_add_u32 {sr(sT[4])}, {sr(sT[4])}, 1")
    g(f"s_cmp_ge_u32 {sr(sT[4])}, 0x20000")
    g("s_cbranch_scc1 L_fpolled")
    g("s_sleep 1")
    g("s_branch L_fpoll")
    g.label("L_fpolled")
    for c in range(4):
        g(f"v_add_f32 {vr(vY+c)}, {vr(vY+c)}, {vr(vY+4+c)}")
        g(f"v_add_f32 {vr(vY+8+c)}, {vr(vY+8+c)}, {vr(vY+12+c)}")
    for c in range(4):
        g(f"v_add_f32 {vr(vY+c)}, {vr(vY+c)}, {vr(vY+8+c)}")
    g(f"v_cvt_pk_bf16_f32 {vr(vY)}, {vr(vY)}, {vr(vY+1)}")
    g(f"v_cvt_pk_bf16_f32 {vr(vY+1)}, {vr(vY+2)}, {vr(vY+3)}")
    g(f"buffer_store_dwordx2 {vr(vY,2)}, {vr(vAl)}, {sr(sOUT,4)}, {sr(sT[0])} offen")
    g(f"s_cmp_eq_u32 {sr(sOB)}, 1")
    g("s_cbranch_scc1 L_fin")
    stamp(g, 13)
    g(f"s_mov_b64 vcc, {sr(sPar,2)}")
    g("s_nop 1")
    g("s_branch L_qk")
    g.label("L_fin")
    if DBG2:
        g(f"s_cmp_lg_u32 {sr(sW)}, 0")
        g("s_cbranch_scc1 L_end")
        g("s_waitcnt vmcnt(0)")
        g("s_memrealtime s[92:93]")
        g("s_waitcnt lgkmcnt(0)")
        g("s_not_b32 s94, s94")
        g("v_mov_b32 v1, s94")
        g("v_mov_b32 v2, s92")
        g("v_mov_b32 v3, s91")
        g("s_mov_b64 exec, 1")
        g(f"buffer_atomic_umax v1, off, {sr(sDBG,4)}, 0 offset:4 sc1")
        g(f"buffer_atomic_umax v2, off, {sr(sDBG,4)}, 0 offset:8 sc1")
        g(f"buffer_atomic_umax v3, off, {sr(sDBG,4)}, 0 offset:12 sc1")
    if DBG: g("s_waitcnt vmcnt(0)")
    stamp(g, 14)
    stamp_flush(g, 16)
    g.label("L_end")
    g("s_endpgm")

g = G()
g.raw(f"; @launch grid=(256,1,1) block=(512,1,1) lds={LDS}")
g.raw('.amdgcn_target "amdgcn-amd-amdhsa--gfx950"\n.text')
kernel(g)
g.raw('.section .rodata,"a"\n.p2align 6')
g.raw(".amdhsa_kernel standalone__mha_block_cached__sampling_kernel")
g.raw(f"  .amdhsa_next_free_vgpr 256\n  .amdhsa_next_free_sgpr 102\n  .amdhsa_accum_offset 256")
g.raw("  .amdhsa_group_segment_fixed_size 0\n  .amdhsa_kernarg_size 64\n  .amdhsa_user_sgpr_count 2")
g.raw("  .amdhsa_user_sgpr_kernarg_segment_ptr 1\n  .amdhsa_system_sgpr_workgroup_id_x 1")
g.raw("  .amdhsa_float_denorm_mode_32 3\n  .amdhsa_float_denorm_mode_16_64 3")
g.raw(".end_amdhsa_kernel")
open(sys.argv[1], "w").write(g.text())
```
